```python
import torch

def _softmax(x, axis=-1):
    return torch.softmax(x, dim=axis)
def _gelu(x):
    return torch.nn.functional.gelu(x, approximate="tanh")
def _silu(x):
    return torch.nn.functional.silu(x)
def _sigmoid(x):
    return torch.sigmoid(x)
def _layernorm(x, axis=-1, eps=1e-5):
    m = x.mean(dim=axis, keepdim=True)
    v = x.var(dim=axis, keepdim=True, unbiased=False)
    return (x - m) / torch.sqrt(v + eps)
def _scatter_add(tgt, idx, src, axis=0):
    return tgt.clone().index_add_(axis, idx, src)
def _segment_sum(src, seg, n):
    out = torch.zeros((n,) + src.shape[1:], dtype=src.dtype)
    return out.index_add_(0, seg, src)
def _pad(x, pw):
    flat = tuple(v for pair in reversed(pw) for v in pair)
    return torch.nn.functional.pad(x, flat)

kernel_name = 'interleave_layers__ssm_conv_h3__mixer_s_mlp__prompt'

def setup_inputs():

    _w = (lambda a: (lambda t: t.to(torch.bfloat16) if t.is_floating_point() else t)(torch.as_tensor(a)))
    def _A_setup():
        B, S, D = 1, 2048, 512
        ks = 4
        return {
            "q": _w((lambda *s: torch.randn(*s, dtype=torch.bfloat16) * 0.05)(B, S, D)),
            "k": _w((lambda *s: torch.randn(*s, dtype=torch.bfloat16) * 0.8)(B, S, D)),
            "v": _w((lambda *s: torch.randn(*s, dtype=torch.bfloat16) * 0.8)(B, S, D)),
            "shift_k": _w((lambda *s: torch.randn(*s, dtype=torch.bfloat16) * 0.8)(D, ks) * 0.5),
            "ssm_k": _w((lambda *s: torch.randn(*s, dtype=torch.bfloat16) * 0.8)(D, S) * (1.0 / S ** 0.5)),
            "ssm_D": _w((lambda *s: torch.randn(*s, dtype=torch.bfloat16) * 0.8)(D)),
        }
    _A_in = _A_setup()

    def _B_setup():
        B, S, D, F = 1, 2048, 512, 1792
        return {
            "x":  _w((lambda *s: torch.randn(*s, dtype=torch.bfloat16) * 0.05)(B, S, D)),
            "w1": _w((lambda *s: torch.randn(*s, dtype=torch.bfloat16) * 3.2)(D, D) * (D ** -0.5)),
            "w2": _w((lambda *s: torch.randn(*s, dtype=torch.bfloat16) * 3.2)(D, D) * (D ** -0.5)),
            "w3": _w((lambda *s: torch.randn(*s, dtype=torch.bfloat16) * 3.2)(D, F) * (D ** -0.5)),
            "w4": _w((lambda *s: torch.randn(*s, dtype=torch.bfloat16) * 3.2)(F, D) * (F ** -0.5)),
        }
    _B_in = _B_setup()

    return {
        "A_q": _A_in["q"],
        "A_k": _A_in["k"],
        "A_v": _A_in["v"],
        "A_shift_k": _A_in["shift_k"],
        "A_ssm_k": _A_in["ssm_k"],
        "A_ssm_D": _A_in["ssm_D"],
        "B_x": _B_in["x"],
        "B_w1": _B_in["w1"],
        "B_w2": _B_in["w2"],
        "B_w3": _B_in["w3"],
        "B_w4": _B_in["w4"],
    }

def reference(A_q, A_k, A_v, A_shift_k, A_ssm_k, A_ssm_D, B_x, B_w1, B_w2, B_w3, B_w4):
    def _A_ref(q, k, v, shift_k, ssm_k, ssm_D):
        B, S, D = q.shape
        ks = shift_k.shape[-1]
        k_pad = _pad(k, ((0, 0), (ks - 1, 0), (0, 0)))
        k_shift = torch.zeros_like(k)
        for t in range(ks):
            k_shift = k_shift + k_pad[:, t:t + S, :] * shift_k[:, ks - 1 - t][None, None, :]
        kv = k_shift * v
        L = 2 * S
        kv_pad = _pad(kv, ((0, 0), (0, S), (0, 0)))
        kf_pad = _pad(ssm_k, ((0, 0), (0, S)))
        kv_f = (lambda x, axes=(-2,-1): torch.fft.rfft2(x.float(), dim=axes))(kv_pad[:, None, :, :], axes=(1, 2))
        kf_f = (lambda x, axes=(-2,-1): torch.fft.rfft2(x.float(), dim=axes))(kf_pad[:, None, :], axes=(1, 2))
        kf_f = (lambda x, *d: x.permute(*d))(kf_f, 1, 2, 0)
        y_f = kv_f * kf_f[None, :, :, :]
        y = (lambda x, s, axes=(-2,-1): torch.fft.irfft2(x, s=s, dim=axes).to(torch.bfloat16))(y_f, (1, L), axes=(1, 2))[:, 0, :S, :]
        y = y + kv * ssm_D[None, None, :]
        return q * y

    def _B_ref(x, w1, w2, w3, w4):
        B, S, D = x.shape
        h = _gelu(_layernorm(x, axis=-1) @ w1)
        c = D // 4
        g0 = _pad(h[:, :, 0*c:1*c], ((0, 0), (1, 0), (0, 0)))[:, :S, :]
        g1 = _pad(h[:, :, 1*c:2*c], ((0, 0), (0, 1), (0, 0)))[:, 1:, :]
        g2 = _pad(h[:, :, 2*c:3*c], ((0, 0), (2, 0), (0, 0)))[:, :S, :]
        g3 = _pad(h[:, :, 3*c:   ], ((0, 0), (0, 2), (0, 0)))[:, 2:, :]
        hs = torch.concatenate([g0, g1, g2, g3], axis=-1) @ w2
        x1 = x + hs
        h2 = _gelu(_layernorm(x1, axis=-1) @ w3) @ w4
        return x1 + h2

    x = A_q
    x = x + _A_ref(_layernorm(x, axis=-1), A_k, A_v, A_shift_k, A_ssm_k, A_ssm_D)
    x = x + _B_ref(_layernorm(x, axis=-1), B_w1, B_w2, B_w3, B_w4)
    x = x + _A_ref(_layernorm(x, axis=-1), A_k, A_v, A_shift_k, A_ssm_k, A_ssm_D)
    x = x + _B_ref(_layernorm(x, axis=-1), B_w1, B_w2, B_w3, B_w4)
    return x
```

```python
import re

REG_RE = re.compile(r'^(-|\|)?(abs\()?([vas])(\d+|\[(\d+):(\d+)\])\)?\|?$')


def parse_reg(tok):
    tok = tok.strip()
    if tok in ('vcc',):
        return [('s', 'vcc_lo'), ('s', 'vcc_hi')]
    if tok in ('vcc_lo', 'vcc_hi', 'm0', 'exec_lo', 'exec_hi', 'scc'):
        return [('s', tok)]
    if tok == 'exec':
        return [('s', 'exec_lo'), ('s', 'exec_hi')]
    m = REG_RE.match(tok)
    if not m:
        return []
    k = m.group(3)
    if m.group(5) is not None:
        return [(k, i) for i in range(int(m.group(5)), int(m.group(6)) + 1)]
    return [(k, int(m.group(4)))]


def split_ops(s):
    out, depth, cur = [], 0, ''
    for ch in s:
        if ch in '[(':
            depth += 1
        if ch in '])':
            depth -= 1
        if ch == ',' and depth == 0:
            out.append(cur.strip())
            cur = ''
        else:
            cur += ch
    if cur.strip():
        out.append(cur.strip())
    return out


TRANS = ('v_exp_f32', 'v_log_f32', 'v_rcp_f32', 'v_rsq_f32', 'v_sqrt_f32', 'v_sin_f32', 'v_cos_f32',
         'v_rcp_iflag_f32')
NODST_S = ('s_cmp', 's_cbranch', 's_branch', 's_waitcnt', 's_barrier', 's_nop', 's_endpgm', 's_setprio',
           's_sleep', 's_bitcmp', 's_setpc', 's_setreg', 's_sendmsg')


class Ins:
    __slots__ = ('text', 'mn', 'dst', 'src', 'cls', 'passes', 'srcc', 'srcab', 'wide_store_data', 'dpp',
                 'mods')


def classify(text):
    t = text.split(';')[0].strip()
    parts = t.split(None, 1)
    mn = parts[0]
    rest = parts[1] if len(parts) > 1 else ''
    ops = split_ops(rest)
    mods = ''
    if ops:
        last = ops[-1]
        sp = last.split(None, 1)
        ops[-1] = sp[0]
        mods = sp[1] if len(sp) > 1 else ''
    I = Ins()
    I.text, I.mn, I.mods = text, mn, mods
    I.dst, I.src, I.passes, I.srcc, I.srcab, I.wide_store_data, I.dpp = [], [], 0, [], [], [], False
    R = [parse_reg(o) for o in ops]
    flat = lambda L: [x for l in L for x in l]
    base = mn
    for suf in ('_e32', '_e64', '_dpp', '_sdwa'):
        if base.endswith(suf):
            base = base[:-len(suf)]
    if mn.startswith('v_mfma'):
        I.cls = 'mfma'
        I.dst = R[0]
        I.srcab = R[1] + R[2]
        I.srcc = R[3]
        I.src = I.srcab + I.srcc
        I.passes = 8 if '32x32x16' in mn else 4 if '16x16x32' in mn else None
        assert I.passes, mn
    elif mn.startswith('v_'):
        I.cls = 'trans' if base in TRANS else 'valu'
        I.dpp = mn.endswith('_dpp') or 'row_' in mods or 'quad_perm' in mods or 'wave_' in mods
        if base.startswith('v_permlane') and 'swap' in base:
            I.dst = R[0] + R[1]
            I.src = R[0] + R[1]
            I.cls = 'permlane'
        elif base.startswith('v_cmpx'):
            raise ValueError('no v_cmpx')
        elif base.startswith('v_cmp'):
            I.dst = R[0]
            I.src = flat(R[1:])
        elif base in ('v_add_co_u32', 'v_sub_co_u32', 'v_subrev_co_u32', 'v_addc_co_u32', 'v_subb_co_u32',
                      'v_mad_u64_u32', 'v_div_scale_f32'):
            I.dst = R[0] + R[1]
            I.src = flat(R[2:])
        elif base in ('v_readfirstlane_b32', 'v_readlane_b32'):
            I.dst = R[0]
            I.src = flat(R[1:])
            I.cls = 'readlane'
        elif base in ('v_fmac_f32', 'v_dot2c_f32_bf16', 'v_writelane_b32', 'v_pk_fmac_f16'):
            I.dst = R[0]
            I.src = flat(R)
        elif base == 'v_nop':
            pass
        else:
            I.dst = R[0]
            I.src = flat(R[1:])
            if I.dpp or mn.endswith('_sdwa'):
                I.src = I.src + R[0]
        if base.startswith('v_dot2'):
            I.cls = 'dot'
    elif mn.startswith('s_load') or mn.startswith('s_buffer_load') or mn.startswith('s_memtime') or \
            mn.startswith('s_memrealtime'):
        I.cls = 'smem'
        I.dst = R[0]
        I.src = flat(R[1:])
    elif mn.startswith('s_'):
        I.cls = 'salu'
        if mn.startswith(NODST_S):
            I.src = flat(R)
        else:
            I.dst = R[0]
            I.src = flat(R[1:])
            if 'saveexec' in mn:
                I.dst = I.dst + parse_reg('exec')
            if mn in ('s_addk_i32', 's_mulk_i32'):
                I.src = I.src + R[0]
    elif mn.startswith('global_load_lds') or (mn.startswith('buffer_load') and ' lds' in (' ' + mods)):
        I.cls = 'vmem_dma'
        I.src = flat(R) + [('s', 'm0')]
    elif mn.startswith('global_load') or mn.startswith('buffer_load'):
        I.cls = 'vmem_load'
        I.dst = R[0]
        I.src = flat(R[1:])
        if 'd16' in mn:
            I.src = I.src + R[0]
    elif mn.startswith('global_store'):
        I.cls = 'vmem_store'
        I.src = flat(R)
        if 'x3' in mn or 'x4' in mn:
            I.wide_store_data = R[1]
    elif mn.startswith('buffer_store'):
        I.cls = 'vmem_store'
        I.src = flat(R)
        if 'x3' in mn or 'x4' in mn:
            I.wide_store_data = R[0]
    elif mn.startswith('global_atomic'):
        I.cls = 'vmem_load' if 'sc0' in mods else 'vmem_store'
        if 'sc0' in mods:
            I.dst = R[0]
            I.src = flat(R[1:])
        else:
            I.src = flat(R)
    elif mn in ('buffer_inv', 'buffer_wbl2'):
        I.cls = 'vmem_store'
    elif mn.startswith('ds_read') or mn.startswith('ds_bpermute') or mn.startswith('ds_permute') or \
            mn.startswith('ds_swizzle'):
        I.cls = 'ds_load'
        I.dst = R[0]
        I.src = flat(R[1:])
        if 'd16' in mn:
            I.src = I.src + R[0]
    elif mn.startswith('ds_'):
        I.cls = 'ds_store'
        I.src = flat(R)
    else:
        raise ValueError('unknown instr ' + text)
    if base == 'v_cndmask_b32' and len(ops) == 3:
        I.src = I.src + parse_reg('vcc')
    return I


VALU_LIKE = ('valu', 'trans', 'permlane', 'readlane', 'dot')


class Asm:
    def __init__(self):
        self.out = []
        self.hist = []
        self.vm = []
        self.lg = []
        self.nlab = 0
        self.auto_wait = True
        self.maxv = -1
        self.maxa = -1
        self.maxs = -1
        self.ninstr = 0

    def raw(self, s):
        self.out.append(s)

    def comment(self, s):
        self.out.append('    ; ' + s)

    def newlabel(self, p='L'):
        self.nlab += 1
        return '%s_%d' % (p, self.nlab)

    def label(self, name, drain=True):
        if drain:
            self.flush_state()
        self.out.append(name + ':')

    def flush_state(self):
        need = 0
        d = 0
        for I, st in reversed(self.hist):
            if I.cls == 'mfma':
                need = max(need, (12 if I.passes == 8 else 8) - d)
            elif I.cls in VALU_LIKE:
                need = max(need, 5 - d)
            elif I.cls == 'vmem_store':
                need = max(need, 2 - d)
            elif I.cls == 'salu':
                need = max(need, 1 - d)
            d += st
            if d > 20:
                break
        if need > 0:
            self.nop(need)

    def nop(self, n):
        while n > 0:
            k = min(n, 16)
            self._emit(classify('s_nop %d' % (k - 1)), k)
            n -= k

    def _emit(self, I, states=1):
        self.out.append('    ' + I.text)
        self.hist.append((I, states))
        self.ninstr += 1
        if len(self.hist) > 40:
            self.hist = self.hist[-30:]

    def wait(self, vm=None, lgkm=None):
        s = []
        if vm is not None:
            vm = min(vm, 63)
            s.append('vmcnt(%d)' % vm)
            if len(self.vm) > vm:
                self.vm = self.vm[len(self.vm) - vm:] if vm > 0 else []
        if lgkm is not None:
            lgkm = min(lgkm, 15)
            s.append('lgkmcnt(%d)' % lgkm)
            if len(self.lg) > lgkm:
                self.lg = self.lg[len(self.lg) - lgkm:] if lgkm > 0 else []
        self._emit(classify('s_waitcnt ' + ' '.join(s)))

    def forget(self):
        self.vm = []
        self.lg = []

    def _auto_wait(self, I):
        touched = set(I.src) | set(I.dst)
        vmn = None
        for idx, d in enumerate(self.vm):
            if d & touched:
                vmn = len(self.vm) - 1 - idx
        lgn = None
        for idx, (k, d) in enumerate(self.lg):
            if d & touched:
                lgn = len(self.lg) - 1 - idx
        if lgn is not None and any(k == 'smem' for k, d in self.lg):
            lgn = 0
        if vmn is not None or lgn is not None:
            self.wait(vm=vmn, lgkm=lgn)

    def _hazard(self, I):
        need = 0
        d = 0
        src, dst = set(I.src), set(I.dst)
        vsrc = {r for r in src if r[0] in 'va'}
        ssrc = {r for r in src if r[0] == 's'}
        for P, st in reversed(self.hist):
            if d > 20:
                break
            pd = set(P.dst)
            req = 0
            if P.cls == 'mfma':
                big = P.passes == 8
                if I.cls == 'mfma':
                    if pd & set(I.srcab):
                        req = max(req, 12 if big else 8)
                    if pd & set(I.srcc):
                        if P.dst == I.srcc and P.passes == I.passes:
                            pass
                        else:
                            req = max(req, 10 if big else 6)
                    elif pd & dst:
                        req = max(req, 12 if big else 8)
                else:
                    if pd & (src | dst):
                        req = max(req, 12 if big else 8)
                    if I.cls in VALU_LIKE and set(P.srcc) & dst:
                        req = max(req, 7 if big else 3)
                    if I.cls in ('vmem_load', 'ds_load') and set(P.srcc) & dst:
                        req = max(req, 7 if big else 3)
            elif P.cls in VALU_LIKE:
                pv = {r for r in pd if r[0] in 'va'}
                ps = {r for r in pd if r[0] == 's'}
                if I.cls == 'mfma' and pv & src:
                    req = max(req, 3 if P.cls == 'dot' else 2)
                if P.cls == 'dot' and pv & (src | dst):
                    if I.cls == 'dot' and I.mn == P.mn and not (pv & set(I.src[1:] if 'dot2c' in I.mn else I.src[:-1])):
                        pass
                    else:
                        req = max(req, 3)
                if I.cls in VALU_LIKE:
                    if I.dpp and pv & vsrc:
                        req = max(req, 2)
                    if I.cls == 'permlane' and pv & vsrc:
                        req = max(req, 2)
                    if I.cls == 'readlane' and pv & vsrc:
                        req = max(req, 1)
                    if P.cls == 'trans' and I.cls != 'trans' and pv & vsrc:
                        req = max(req, 1)
                    if P.cls == 'trans' and I.cls == 'trans' and pv & vsrc:
                        req = max(req, 1)
                    if ps & ssrc:
                        req = max(req, 4 if I.cls == 'readlane' or I.mn.startswith('v_writelane') else 2)
                    if (P.mn.endswith('_sdwa') or 'op_sel' in P.mods) and pv & (vsrc | dst):
                        req = max(req, 1)
                if I.cls.startswith('vmem') and ps & ssrc:
                    req = max(req, 5)
                if I.cls in ('salu', 'smem') and ps & ssrc:
                    req = max(req, 2)
                if P.cls == 'trans' and (I.cls.startswith('vmem') or I.cls.startswith('ds')) and pv & vsrc:
                    req = max(req, 1)
            elif P.cls == 'vmem_store' and P.wide_store_data:
                if set(P.wide_store_data) & dst:
                    req = max(req, 2)
            elif P.cls == 'salu':
                if ('s', 'm0') in pd and I.cls == 'vmem_dma':
                    req = max(req, 1)
            if req - d > need:
                need = req - d
            d += st
        if need > 0:
            self.nop(need)

    def i(self, text):
        for line in text.strip().split('\n'):
            line = line.strip()
            if not line or line.startswith(';'):
                continue
            I = classify(line)
            for k, r in I.dst + I.src:
                if isinstance(r, int):
                    if k == 'v':
                        self.maxv = max(self.maxv, r)
                    elif k == 'a':
                        self.maxa = max(self.maxa, r)
                    else:
                        self.maxs = max(self.maxs, r)
            if I.mn == 's_waitcnt':
                vm = re.search(r'vmcnt\((\d+)\)', line)
                lg = re.search(r'lgkmcnt\((\d+)\)', line)
                self.wait(vm=int(vm.group(1)) if vm else None, lgkm=int(lg.group(1)) if lg else None)
                continue
            if I.mn == 's_nop':
                self._emit(I, int(line.split()[1], 0) + 1)
                continue
            if self.auto_wait:
                self._auto_wait(I)
            if I.mn.startswith('s_cbranch') or I.mn.startswith('s_branch'):
                self.flush_state()
            self._hazard(I)
            self._emit(I)
            if I.cls.startswith('vmem'):
                self.vm.append(set(I.dst))
                if len(self.vm) > 63:
                    pass
            elif I.cls in ('ds_load', 'ds_store'):
                self.lg.append(('ds', set(I.dst)))
            elif I.cls == 'smem':
                self.lg.append(('smem', set(I.dst)))

    def text(self):
        return '\n'.join(self.out) + '\n'


def kernel_header(name):
    return ('.globl %s\n.p2align 8\n.type %s,@function\n%s:' % (name, name, name))


def kernel_desc(name, vgpr, agpr=0, sgpr=102, wgy=False):
    acc = (vgpr + 3) // 4 * 4
    if acc > 256:
        raise ValueError('too many vgprs')
    nfv = acc + agpr if agpr else vgpr
    s = '''.p2align 6
.amdhsa_kernel %s
  .amdhsa_next_free_vgpr %d
  .amdhsa_next_free_sgpr %d
  .amdhsa_accum_offset %d
  .amdhsa_group_segment_fixed_size 0
  .amdhsa_kernarg_size 112
  .amdhsa_user_sgpr_count 2
  .amdhsa_user_sgpr_kernarg_segment_ptr 1
  .amdhsa_system_sgpr_workgroup_id_x 1
''' % (name, nfv, sgpr, acc)
    if wgy:
        s += '  .amdhsa_system_sgpr_workgroup_id_y 1\n'
    s += '.end_amdhsa_kernel\n'
    return s
```

```python
import sys
import struct
from asmgen import *

KN = 'interleave_layers__ssm_conv_h3__mixer_s_mlp__prompt'
S, D, F = 2048, 512, 1792

FLAGS = 0x0
KVT = 0x100000
YAF = 0x300000
WF1 = 0x500000
WF2 = 0x580000
WF3 = 0x600000
WF4 = 0x800000
LBASE = 0x1000000
LSTRIDE = 0x1400000
O_XIN, O_M, O_N, O_XP, O_HS, O_A1, O_H2 = [i * 0x200000 for i in range(7)]
WS_BYTES = 268435456
KS3 = 33

KA = dict(q=0, k=8, v=16, sk=24, ssm_k=32, ssm_D=40, bx=48, w1=56, w2=64, w3=72, w4=80, out=88, dbg=96, ws=104)


def f32(x):
    return '0x%08x' % struct.unpack('<I', struct.pack('<f', x))[0]


def srd(a, d, ptr, nbytes):
    a.i('s_mov_b32 s%d, s%d' % (d, ptr))
    a.i('s_mov_b32 s%d, s%d' % (d + 1, ptr + 1))
    a.i('s_mov_b32 s%d, 0x%x' % (d + 2, nbytes))
    a.i('s_mov_b32 s%d, 0x20000' % (d + 3))


def v4(i, k='v'):
    return '%s[%d:%d]' % (k, i, i + 3)


def gen_k0a(a):
    name = 'prep_kernel'
    a.raw(kernel_header(name))
    a.forget()
    a.i('s_cmp_ge_u32 s2, 256')
    a.i('s_cbranch_scc1 K0A_end')
    a.i('s_load_dwordx4 s[4:7], s[0:1], %d' % KA['k'])
    a.i('s_load_dwordx2 s[24:25], s[0:1], %d' % KA['sk'])
    a.i('s_load_dwordx2 s[26:27], s[0:1], %d' % KA['ws'])
    a.i('s_and_b32 s3, s2, 7')
    a.i('s_lshr_b32 s28, s2, 3')
    a.i('v_and_b32 v1, 31, v0')
    a.i('v_lshrrev_b32 v2, 5, v0')
    a.i('s_lshl_b32 s29, s28, 3')
    a.i('v_add_u32 v2, s29, v2')
    a.i('s_lshl_b32 s30, s3, 5')
    a.i('v_add_u32 v1, s30, v1')
    a.i('v_lshlrev_b32 v3, 13, v2')
    a.i('v_lshl_add_u32 v3, v1, 2, v3')
    a.i('v_add_u32 v4, 4096, v3')
    a.i('v_subrev_u32 v5, 3072, v3')
    a.i('v_lshlrev_b32 v6, 4, v1')
    a.i('s_waitcnt lgkmcnt(0)')
    srd(a, 8, 4, S * D * 2)
    srd(a, 12, 6, S * D * 2)
    srd(a, 16, 24, D * 4 * 2)
    srd(a, 20, 26, WS_BYTES)
    a.i('buffer_load_dwordx4 v[8:11], v6, s[16:19], 0 offen')
    for e in range(3):
        a.i('buffer_load_dword v%d, v5, s[8:11], 0 offen offset:%d' % (12 + e, e * 1024))
    for e in range(8):
        a.i('buffer_load_dword v%d, v%d, s[8:11], 0 offen offset:%d' % (15 + e, 3 if e < 4 else 4, (e % 4) * 1024))
    for e in range(8):
        a.i('buffer_load_dword v%d, v%d, s[12:15], 0 offen offset:%d' % (24 + e, 3 if e < 4 else 4, (e % 4) * 1024))
    a.i('s_cmp_eq_u32 s2, 0')
    a.i('s_cbranch_scc0 K0A_nz')
    a.i('v_mov_b32 v80, 0\nv_mov_b32 v81, 0\nv_mov_b32 v82, 0\nv_mov_b32 v83, 0\nv_lshlrev_b32 v84, 4, v0')
    a.i('buffer_store_dwordx4 v[80:83], v84, s[20:23], 0 offen')
    a.label('K0A_nz')
    a.i('s_waitcnt vmcnt(0)')
    for c in range(2):
        for p in range(2):
            a.i('v_lshlrev_b32 v%d, 16, v%d' % (32 + 4 * c + 2 * p, 8 + 2 * c + p))
            a.i('v_and_b32 v%d, 0xffff0000, v%d' % (33 + 4 * c + 2 * p, 8 + 2 * c + p))
    for e in range(11):
        a.i('v_lshlrev_b32 v%d, 16, v%d' % (40 + e, 12 + e))
        a.i('v_and_b32 v%d, 0xffff0000, v%d' % (52 + e, 12 + e))
    for c in range(2):
        kb = 40 + 12 * c
        tb = 32 + 4 * c
        for e in range(8):
            d = 64 + 8 * c + e
            a.i('v_mul_f32 v%d, v%d, v%d' % (d, kb + 3 + e, tb))
            for i in range(1, 4):
                a.i('v_fmac_f32 v%d, v%d, v%d' % (d, kb + 3 + e - i, tb + i))
    for e in range(8):
        a.i('v_lshlrev_b32 v7, 16, v%d' % (24 + e))
        a.i('v_mul_f32 v%d, v%d, v7' % (64 + e, 64 + e))
        a.i('v_and_b32 v7, 0xffff0000, v%d' % (24 + e))
        a.i('v_mul_f32 v%d, v%d, v7' % (72 + e, 72 + e))
    for c in range(2):
        for p in range(4):
            a.i('v_cvt_pk_bf16_f32 v%d, v%d, v%d' % (8 + 4 * c + p, 64 + 8 * c + 7 - 2 * p, 64 + 8 * c + 6 - 2 * p))
    a.i('v_sub_u32 v2, 255, v2')
    a.i('v_lshlrev_b32 v2, 4, v2')
    a.i('v_lshl_add_u32 v2, v1, 13, v2')
    a.i('s_mov_b32 s30, 0x%x' % KVT)
    a.i('s_mov_b32 s31, 0x%x' % (KVT + 4096))
    a.i('buffer_store_dwordx4 v[8:11], v2, s[20:23], s30 offen')
    a.i('buffer_store_dwordx4 v[12:15], v2, s[20:23], s31 offen')
    a.label('K0A_end')
    a.i('s_endpgm')
    return name, 88, 0


K0B_GRID = 464
CV_KVR = 0
CV_KVS = 4608
CV_E = 9216
CV_OOFF = 4160
CV_CHS = 8320
CV_RED = 0
K0B_LDS = 33280


def gen_k0b(a):
    name = 'conv_kernel'
    a.raw(kernel_header(name))
    a.forget()
    a.i('s_cmp_ge_u32 s2, %d' % K0B_GRID)
    a.i('s_cbranch_scc1 K0B_end')
    a.i('s_load_dwordx2 s[26:27], s[0:1], %d' % KA['ws'])
    a.i('s_load_dwordx4 s[4:7], s[0:1], %d' % KA['ssm_k'])
    a.i('s_load_dwordx8 s[36:43], s[0:1], %d' % KA['w1'])
    a.i('s_load_dwordx2 s[44:45], s[0:1], %d' % KA['q'])
    a.i('v_lshrrev_b32 v1, 6, v0')
    a.i('v_and_b32 v2, 63, v0')
    a.i('v_readfirstlane_b32 s18, v1')
    a.i('s_waitcnt lgkmcnt(0)')
    srd(a, 20, 26, WS_BYTES)
    a.i('s_cmp_ge_u32 s2, 256')
    a.i('s_cbranch_scc1 K0B_relayout')
    srd(a, 8, 4, D * S * 2)
    a.i('s_and_b32 s3, s2, 7')
    a.i('s_lshl_b32 s3, s3, 6')
    a.i('s_lshr_b32 s28, s2, 3')
    a.i('s_lshl_b32 s28, s28, 1')
    a.i('s_add_u32 s3, s3, s28')
    a.i('s_lshl_b32 s28, s3, 1')
    a.i('s_load_dword s33, s[6:7], s28')
    a.i('s_lshl_b32 s29, s3, 12')
    a.i('s_add_u32 s30, s29, 4096')
    a.i('s_add_u32 s31, s29, 0x%x' % KVT)
    a.i('s_add_u32 s32, s30, 0x%x' % KVT)
    a.i('v_lshlrev_b32 v3, 4, v0')
    a.i('v_subrev_u32 v4, 4, v3')
    a.i('buffer_load_dwordx4 v[8:11], v3, s[20:23], s31 offen')
    a.i('buffer_load_dwordx4 v[12:15], v3, s[20:23], s32 offen')
    a.i('buffer_load_dwordx4 v[16:19], v3, s[8:11], s29 offen')
    a.i('buffer_load_dword v24, v4, s[8:11], s29 offen')
    a.i('buffer_load_dwordx4 v[20:23], v3, s[8:11], s30 offen')
    a.i('buffer_load_dword v25, v4, s[8:11], s30 offen')
    a.i('v_mov_b32 v28, 0\nv_mov_b32 v29, 0\nv_mov_b32 v30, 0\nv_mov_b32 v31, 0')
    a.i('v_cmp_gt_u32 vcc, 32, v0')
    a.i('s_and_saveexec_b64 s[34:35], vcc')
    a.i('ds_write_b128 v3, v[28:31] offset:%d' % (CV_KVR + 4096))
    a.i('ds_write_b128 v3, v[28:31] offset:%d' % (CV_KVR + CV_KVS + 4096))
    a.i('s_mov_b64 exec, s[34:35]')
    a.i('v_cmp_gt_u32 vcc, 2, v0')
    a.i('s_and_saveexec_b64 s[34:35], vcc')
    for c in range(2):
        a.i('ds_write_b128 v3, v[28:31] offset:%d' % (CV_E + c * CV_CHS))
        a.i('ds_write_b128 v3, v[28:31] offset:%d' % (CV_E + c * CV_CHS + CV_OOFF))
    a.i('s_mov_b64 exec, s[34:35]')
    a.i('v_and_b32 v5, 15, v2')
    a.i('v_lshrrev_b32 v6, 4, v2')
    a.i('s_and_b32 s46, s18, 1')
    a.i('s_lshr_b32 s47, s18, 1')
    a.i('s_mul_i32 s48, s46, %d' % CV_KVS)
    a.i('s_lshl_b32 s49, s47, 8')
    a.i('s_add_u32 s48, s48, s49')
    a.i('s_add_u32 s48, s48, %d' % (CV_KVR + 480))
    a.i('v_lshlrev_b32 v7, 5, v5')
    a.i('v_sub_u32 v32, s48, v7')
    a.i('v_lshl_add_u32 v32, v6, 4, v32')
    a.i('s_mul_i32 s48, s46, %d' % CV_CHS)
    a.i('s_add_u32 s48, s48, s49')
    a.i('s_add_u32 s48, s48, %d' % (CV_E + CV_OOFF))
    a.i('v_add_u32 v7, 2, v5')
    a.i('v_lshrrev_b32 v7, 1, v7')
    a.i('v_lshlrev_b32 v7, 2, v7')
    a.i('v_lshl_add_u32 v7, v6, 4, v7')
    a.i('v_add_u32 v7, s48, v7')
    a.i('v_and_b32 v26, 1, v5')
    a.i('v_mul_u32_u24 v26, %d, v26' % CV_OOFF)
    a.i('v_sub_u32 v33, v7, v26')
    for b in range(1, 8):
        a.i('v_add_u32 v%d, %d, v33' % (33 + b, 512 * b))
    a.i('s_lshl_b32 s49, s46, 4')
    a.i('s_lshr_b32 s33, s33, s49')
    a.i('s_and_b32 s33, s33, 0xffff')
    a.i('s_cmp_eq_u32 s47, 0')
    a.i('s_cselect_b32 s33, s33, 0')
    a.i('v_lshl_add_u32 v26, v6, 3, v5')
    a.i('v_sub_u32 v26, 15, v26')
    a.i('v_and_b32 v27, 1, v26')
    a.i('v_lshlrev_b32 v27, 4, v27')
    a.i('v_lshlrev_b32 v27, v27, s33')
    a.i('v_ashrrev_i32 v26, 1, v26')
    for p in range(4):
        a.i('v_cmp_eq_u32 vcc, %d, v26' % p)
        a.i('v_cndmask_b32 v%d, 0, v27, vcc' % (44 + p))
    a.i('ds_write_b128 v3, v[8:11] offset:%d' % CV_KVR)
    a.i('ds_write_b128 v3, v[12:15] offset:%d' % (CV_KVR + CV_KVS))
    for c in range(2):
        kb = 16 + 4 * c
        a.i('ds_write_b128 v3, %s offset:%d' % (v4(kb), CV_E + c * CV_CHS + 32))
        a.i('v_alignbit_b32 v28, v%d, v%d, 16' % (kb, 24 + c))
        for p in range(1, 4):
            a.i('v_alignbit_b32 v%d, v%d, v%d, 16' % (28 + p, kb + p, kb + p - 1))
        a.i('ds_write_b128 v3, v[28:31] offset:%d' % (CV_E + c * CV_CHS + CV_OOFF + 32))
        a.i('s_waitcnt lgkmcnt(0)')
    a.i('s_barrier')
    ACC = 48
    FA = [80, 144]
    FB = [112, 176]

    def loads(cc, buf):
        L = []
        for d in range(8):
            L.append('ds_read_b128 %s, v32 offset:%d' % (v4(FA[buf] + 4 * d), 512 * (7 - d) + 64 * cc))
            L.append('ds_read2_b32 v[%d:%d], v%d offset0:%d offset1:%d' % (
                FB[buf] + 4 * d, FB[buf] + 4 * d + 1, 33 + d, 16 * cc, 16 * cc + 1))
            L.append('ds_read2_b32 v[%d:%d], v%d offset0:%d offset1:%d' % (
                FB[buf] + 4 * d + 2, FB[buf] + 4 * d + 3, 33 + d, 16 * cc + 2, 16 * cc + 3))
        return L
    for x in loads(0, 0):
        a.i(x)
    for cc in range(4):
        buf = cc & 1
        nxt = loads(cc + 1, buf ^ 1) if cc < 3 else []
        mf = []
        if cc == 0:
            for m in range(8):
                mf.append('v_mfma_f32_16x16x32_bf16 %s, %s, v[44:47], 0' % (v4(ACC + 4 * m), v4(FA[buf] + 4 * m)))
        pairs = sorted([(m, b) for m in range(8) for b in range(m + 1)], key=lambda t: (max(t[0] - t[1], t[1]), t[1]))
        for m, b in pairs:
            mf.append('v_mfma_f32_16x16x32_bf16 %s, %s, %s, %s' % (
                v4(ACC + 4 * m), v4(FA[buf] + 4 * (m - b)), v4(FB[buf] + 4 * b), v4(ACC + 4 * m)))
        if cc > 0:
            pass
        k = 0
        for n, x in enumerate(mf):
            a.i(x)
            if n >= 8 and k < len(nxt):
                a.i(nxt[k])
                k += 1
        while k < len(nxt):
            a.i(nxt[k])
            k += 1
    a.i('s_barrier')
    a.i('v_lshlrev_b32 v3, 4, v2')
    a.i('s_lshl_b32 s48, s18, 13')
    a.i('v_add_u32 v4, s48, v3')
    for m in range(8):
        a.i('ds_write_b128 v4, %s offset:%d' % (v4(ACC + 4 * m), 1024 * m))
    a.i('s_lshl_b32 s48, s18, 11')
    a.i('v_add_u32 v4, s48, v3')
    a.i('s_lshr_b32 s48, s3, 4\ns_lshl_b32 s48, s48, 10')
    a.i('s_and_b32 s49, s3, 4\ns_lshl_b32 s49, s49, 7')
    a.i('s_add_u32 s48, s48, s49')
    a.i('s_and_b32 s49, s3, 2\ns_lshl_b32 s49, s49, 1')
    a.i('s_add_u32 s48, s48, s49')
    a.i('s_and_b32 s49, s3, 8')
    a.i('s_add_u32 s48, s48, s49')
    a.i('s_lshl_b32 s49, s18, 19')
    a.i('s_add_u32 s48, s48, s49')
    a.i('s_add_u32 s48, s48, 0x%x' % YAF)
    a.i('v_lshlrev_b32 v7, 16, v6')
    a.i('v_lshl_add_u32 v7, v5, 4, v7')
    a.i('s_waitcnt lgkmcnt(0)')
    a.i('s_barrier')
    for mm in range(2):
        for src in range(4):
            a.i('ds_read_b128 %s, v4 offset:%d' % (v4(80 + 16 * mm + 4 * src), src * 8192 + mm * 1024))
    for mm in range(2):
        b = 80 + 16 * mm
        for r in range(4):
            a.i('v_add_f32 v%d, v%d, v%d' % (b + r, b + r, b + 8 + r))
            a.i('v_add_f32 v%d, v%d, v%d' % (b + 4 + r, b + 4 + r, b + 12 + r))
            a.i('v_cvt_pk_bf16_f32 v%d, v%d, v%d' % (b + r, b + r, b + 4 + r))
        for r in range(4):
            a.i('s_add_u32 s49, s48, 0x%x' % (mm * 8 * 32768 + (r >> 1) * 32768))
            a.i('buffer_store_dword v%d, v7, s[20:23], s49 offen offset:%d' % (b + r, 256 * (r & 1)))
    a.i('s_endpgm')

    a.label('K0B_relayout')
    a.forget()
    a.i('s_cmp_ge_u32 s2, 400')
    a.i('s_cbranch_scc1 K0B_q')
    a.i('s_sub_u32 s3, s2, 256')
    a.i('s_lshl_b32 s51, s18, 3')
    a.i('s_mov_b32 s52, 1024\ns_mov_b32 s53, 32\ns_mov_b32 s55, 0x%x' % (D * D * 2))
    a.i('s_mov_b32 s50, s3\ns_mov_b64 s[4:5], s[36:37]\ns_mov_b32 s54, 0x%x' % WF1)
    a.i('s_cmp_lt_u32 s3, 16')
    a.i('s_cbranch_scc1 K0B_go')
    a.i('s_sub_u32 s50, s3, 16\ns_mov_b64 s[4:5], s[38:39]\ns_mov_b32 s54, 0x%x' % WF2)
    a.i('s_cmp_lt_u32 s3, 32')
    a.i('s_cbranch_scc1 K0B_go')
    a.i('s_sub_u32 s50, s3, 32\ns_mov_b64 s[4:5], s[40:41]\ns_mov_b32 s54, 0x%x' % WF3)
    a.i('s_mov_b32 s52, %d\ns_mov_b32 s53, %d\ns_mov_b32 s55, 0x%x' % (F * 2, KS3, D * F * 2))
    a.i('s_cmp_lt_u32 s3, 88')
    a.i('s_cbranch_scc1 K0B_go')
    a.i('s_sub_u32 s50, s3, 88\ns_lshl_b32 s50, s50, 2\ns_add_u32 s56, s50, s18')
    a.i('s_mul_i32 s50, s56, 4682\ns_lshr_b32 s50, s50, 16')
    a.i('s_mul_i32 s57, s50, 14\ns_sub_u32 s51, s56, s57\ns_lshl_b32 s51, s51, 3')
    a.i('s_mov_b64 s[4:5], s[42:43]\ns_mov_b32 s54, 0x%x' % WF4)
    a.i('s_mov_b32 s52, 1024\ns_mov_b32 s53, 112')
    a.label('K0B_go')
    a.i('s_mov_b32 s8, s4\ns_mov_b32 s9, s5\ns_mov_b32 s10, s55\ns_mov_b32 s11, 0x20000')
    a.i('v_lshrrev_b32 v3, 3, v2')
    a.i('v_add_u32 v3, s51, v3')
    a.i('v_lshlrev_b32 v3, 4, v3')
    a.i('v_and_b32 v4, 4, v2')
    a.i('v_add_u32 v3, v3, v4')
    a.i('v_mul_lo_u32 v3, v3, s52')
    a.i('v_and_b32 v4, 3, v2')
    a.i('v_lshl_add_u32 v3, v4, 4, v3')
    a.i('s_lshl_b32 s56, s50, 6')
    for j in range(8):
        a.i('s_mul_i32 s57, s52, %d' % (8 * (j >> 2) + (j & 3)))
        a.i('s_add_u32 s57, s57, s56')
        a.i('buffer_load_dwordx4 %s, v3, s[8:11], s57 offen' % v4(8 + 4 * j))
    a.i('v_and_b32 v4, 7, v2')
    a.i('v_lshl_add_u32 v4, v2, 3, v4')
    a.i('v_lshlrev_b32 v4, 4, v4')
    a.i('s_lshl_b32 s57, s18, 13')
    a.i('v_add_u32 v4, s57, v4')
    a.i('v_lshrrev_b32 v5, 3, v2')
    a.i('v_xor_b32 v5, v5, v2')
    a.i('v_and_b32 v5, 7, v5')
    a.i('v_and_b32 v6, 56, v2')
    a.i('v_or_b32 v5, v5, v6')
    a.i('v_lshlrev_b32 v5, 4, v5')
    a.i('v_add_u32 v5, s57, v5')
    a.i('s_mov_b32 s58, 0x05040100\ns_mov_b32 s59, 0x07060302')
    for e in range(8):
        o = 40 + 4 * (e & 1)
        for p in range(4):
            a.i('v_perm_b32 v%d, v%d, v%d, s%d' % (o + p, 8 + 4 * (2 * p + 1) + (e >> 1), 8 + 4 * (2 * p) + (e >> 1),
                                                   58 + (e & 1)))
        a.i('v_xor_b32 v6, %d, v4' % (16 * e))
        a.i('ds_write_b128 v6, %s' % v4(o))
        if e & 1:
            a.i('s_waitcnt lgkmcnt(0)')
    for ksl in range(8):
        a.i('ds_read_b128 %s, v5 offset:%d' % (v4(8 + 4 * ksl), 1024 * ksl))
    a.i('s_mul_i32 s56, s50, s53')
    a.i('s_add_u32 s57, s56, s51')
    a.i('s_lshl_b32 s57, s57, 10')
    a.i('s_add_u32 s57, s57, s54')
    a.i('s_add_u32 s58, s57, 4096')
    a.i('v_lshlrev_b32 v3, 4, v2')
    for ksl in range(8):
        a.i('buffer_store_dwordx4 %s, v3, s[20:23], s%d offen offset:%d' % (
            v4(8 + 4 * ksl), 57 + (ksl >> 2), 1024 * (ksl & 3)))
    a.i('s_cmp_eq_u32 s53, %d' % KS3)
    a.i('s_cbranch_scc0 K0B_end')
    a.i('v_mov_b32 v40, 0x3f803f80\nv_mov_b32 v41, v40\nv_mov_b32 v42, v40\nv_mov_b32 v43, v40')
    for ksl in range(8):
        a.i('v_mfma_f32_32x32x16_bf16 v[48:63], v[40:43], %s, %s' % (v4(8 + 4 * ksl), 'v[48:63]' if ksl else '0'))
    a.i('v_lshlrev_b32 v4, 2, v0')
    a.i('ds_write_b32 v4, v48 offset:32768')
    a.i('s_waitcnt lgkmcnt(0)')
    a.i('s_barrier')
    a.i('s_cmp_eq_u32 s18, 0')
    a.i('s_cbranch_scc0 K0B_end')
    for w in range(4):
        a.i('ds_read_b32 v%d, v4 offset:%d' % (44 + w, 32768 + 256 * w))
    a.i('v_add_f32 v44, v44, v45\nv_add_f32 v46, v46, v47\nv_add_f32 v44, v44, v46')
    a.i('v_cvt_pk_bf16_f32 v8, v44, v44')
    a.i('v_and_b32 v45, 0xffff0000, v8')
    a.i('v_sub_f32 v45, v44, v45')
    a.i('v_cvt_pk_bf16_f32 v9, v45, v45')
    a.i('v_cmp_gt_u32 vcc, 32, v2')
    a.i('v_cndmask_b32 v8, 0, v8, vcc\nv_cndmask_b32 v9, 0, v9, vcc')
    a.i('v_mov_b32 v10, 0\nv_mov_b32 v11, 0')
    a.i('s_add_u32 s57, s56, 32\ns_lshl_b32 s57, s57, 10\ns_add_u32 s57, s57, s54')
    a.i('buffer_store_dwordx4 v[8:11], v3, s[20:23], s57 offen')
    a.i('s_endpgm')

    a.label('K0B_q')
    a.forget()
    srd(a, 8, 44, S * D * 2)
    a.i('s_sub_u32 s3, s2, 400')
    a.i('v_and_b32 v3, 31, v2')
    a.i('v_lshlrev_b32 v3, 10, v3')
    a.i('v_lshrrev_b32 v4, 5, v2')
    a.i('v_lshl_add_u32 v3, v4, 4, v3')
    a.i('s_lshl_b32 s56, s3, 15')
    a.i('s_lshl_b32 s57, s18, 8')
    a.i('s_add_u32 s57, s57, s56')
    for ksl in range(8):
        a.i('buffer_load_dwordx4 %s, v3, s[8:11], s57 offen offset:%d' % (v4(8 + 4 * ksl), 32 * ksl))
    a.i('s_lshl_b32 s57, s18, 13')
    a.i('s_add_u32 s57, s57, s56')
    a.i('s_add_u32 s57, s57, 0x%x' % (LBASE + O_XIN))
    a.i('s_add_u32 s58, s57, 4096')
    a.i('v_lshlrev_b32 v3, 4, v2')
    for ksl in range(8):
        b = 8 + 4 * ksl
        a.i('v_permlane32_swap_b32 v%d, v%d' % (b, b + 2))
        a.i('v_permlane32_swap_b32 v%d, v%d' % (b + 1, b + 3))
        a.i('buffer_store_dwordx4 %s, v3, s[20:23], s%d offen offset:%d' % (v4(b), 57 + (ksl >> 2), 1024 * (ksl & 3)))
    a.label('K0B_end')
    a.i('s_endpgm')
    return name, 208, 0


K1_LDS = 65536 + 4096
L_STAT = 65536
vL16, vRW, vRR, vHS, vHM, vPA, vPB, vPC, vFL, vRa, vC1, vG3W, vOUT = 1, 2, 5, 6, 7, 8, 9, 10, 11, 12, 13, 14, 15
vT = 16
vRES = 32
vY = 48
vCS = 56
vACC = 64
vB = 128
vWS = 192
sC, sS, sW, sLB, sPH = 16, 17, 18, 19, 20
sOwn, sBq, sBqx0, sBqx1 = 21, 22, 23, 24
sW1a, sW1b, sW3a, sW3b, sW4a, sW4b = 25, 26, 27, 28, 29, 30
sH2o, sH2x0, sH2x1, sHSo, sOutO = 31, 32, 33, 34, 35
sC0, sTO = 36, 37
sT = 40
GC0 = -2.0 * 1.4426950408889634 * 0.7978845608028654
GC1 = GC0 * 0.044715


class K1:
    def __init__(self, a):
        self.a = a
        self.pfq = []

    def pf(self, n):
        k = 0
        while self.pfq and k < n:
            for x in self.pfq.pop(0):
                self.a.i(x)
            k += 1

    def frag_loads(self, dst, kind, sbase, n, st, sc=''):
        L = []
        for j in range(n):
            g = []
            if j % 4 == 0:
                g.append('s_add_u32 s%d, s%d, %d' % (st, sbase, 1024 * j))
            g.append('buffer_load_dwordx4 %s, v%d, s[8:11], s%d offen offset:%d%s' % (
                v4(dst(j), kind), vL16, st, 1024 * (j % 4), sc))
            L.append(g)
        return L

    def publish(self):
        a = self.a
        a.i('s_add_u32 s%d, s%d, 1' % (sPH, sPH))
        a.i('v_mov_b32 v%d, s%d' % (vT, sPH))
        a.i('s_waitcnt vmcnt(0)')
        a.i('s_barrier')
        l = a.newlabel('NOF')
        a.i('s_cmp_eq_u32 s%d, 0' % sW)
        a.i('s_cbranch_scc0 %s' % l)
        a.i('s_mov_b64 exec, 1')
        a.i('buffer_store_dword v%d, v%d, s[8:11], 0 offen sc1' % (vT, vFL))
        a.i('s_mov_b64 exec, -1')
        a.label(l)
        a.forget()

    def poll(self, vaddr):
        a = self.a
        lp, lg = a.newlabel('POLL'), a.newlabel('GO')
        a.label(lp)
        a.i('buffer_load_dword v%d, v%d, s[8:11], 0 offen sc1' % (vT, vaddr))
        a.i('s_sub_u32 s%d, s%d, 1' % (sTO, sTO))
        a.i('s_cbranch_scc1 K1_timeout')
        a.i('s_waitcnt vmcnt(0)')
        a.i('v_cmp_gt_u32 vcc, s%d, v%d' % (sPH, vT))
        a.i('s_cmp_eq_u64 vcc, 0')
        a.i('s_cbranch_scc0 %s' % lp)
        a.forget()

    def reduce2(self, x, y, t1, t2):
        a = self.a
        for r in (8, 4, 2):
            a.i('v_add_f32_dpp v%d, v%d, v%d row_ror:%d row_mask:0xf bank_mask:0xf' % (x, x, x, r))
            a.i('v_add_f32_dpp v%d, v%d, v%d row_ror:%d row_mask:0xf bank_mask:0xf' % (y, y, y, r))
        for op in ('v_permlane16_swap_b32', 'v_permlane32_swap_b32'):
            a.i('v_mov_b32 v%d, v%d\nv_mov_b32 v%d, v%d' % (t1, x, t2, y))
            a.i('%s v%d, v%d' % (op, x, t1))
            a.i('%s v%d, v%d' % (op, y, t2))
            a.i('v_add_f32 v%d, v%d, v%d\nv_add_f32 v%d, v%d, v%d' % (x, x, t1, y, y, t2))

    def ln_finish(self, s1, s2, t):
        a = self.a
        a.i('v_mul_f32 v%d, %s, v%d' % (s1, f32(1.0 / 512), s1))
        a.i('v_mul_f32 v%d, %s, v%d' % (s2, f32(1.0 / 512), s2))
        a.i('v_fma_f32 v%d, -v%d, v%d, v%d' % (s2, s1, s1, s2))
        a.i('v_max_f32 v%d, 0, v%d' % (s2, s2))
        a.i('v_add_f32 v%d, %s, v%d' % (s2, f32(1e-5), s2))
        a.i('v_rsq_f32 v%d, v%d' % (s2, s2))
        a.i('v_mul_f32 v%d, -v%d, v%d' % (s1, s1, s2))

    def stats16(self, x, s1, s2):
        a = self.a
        a.i('v_add_f32 v%d, v%d, v%d' % (s1, x, x + 1))
        a.i('v_mul_f32 v%d, v%d, v%d' % (s2, x, x))
        a.i('v_fmac_f32 v%d, v%d, v%d' % (s2, x + 1, x + 1))
        for e in range(2, 16):
            a.i('v_add_f32 v%d, v%d, v%d' % (s1, s1, x + e))
            a.i('v_fmac_f32 v%d, v%d, v%d' % (s2, x + e, x + e))

    def unpack(self, dst, src, n):
        for p in range(n):
            self.a.i('v_lshlrev_b32 v%d, 16, v%d' % (dst + 2 * p, src + p))
            self.a.i('v_and_b32 v%d, 0xffff0000, v%d' % (dst + 2 * p + 1, src + p))

    def pack(self, dst, src, n):
        for p in range(n):
            self.a.i('v_cvt_pk_bf16_f32 v%d, v%d, v%d' % (dst + p, src + 2 * p, src + 2 * p + 1))

    def gelu_ops(self, z, t1, t2):
        return ['v_mul_f32 v%d, v%d, v%d' % (t1, z, z),
                'v_fma_f32 v%d, v%d, v%d, s%d' % (t1, t1, vC1, sC0),
                'v_mul_f32 v%d, v%d, v%d' % (t1, t1, z),
                'v_exp_f32 v%d, v%d' % (t1, t1),
                'v_add_f32 v%d, 1.0, v%d' % (t1, t1),
                'v_rcp_f32 v%d, v%d' % (t1, t1),
                'v_mul_f32 v%d, v%d, v%d' % (z, z, t1)]

    def gelu_block(self, z0, n, tmp, pre=None):
        L = []
        for g in range(0, n, 4):
            seqs = []
            for e in range(4):
                s = []
                if pre:
                    s.append(pre(z0 + g + e))
                s += self.gelu_ops(z0 + g + e, tmp + e, None)
                seqs.append(s)
            for k in range(len(seqs[0])):
                for e in range(4):
                    L.append(seqs[e][k])
        return L

    def reduce_scatter(self):
        a = self.a
        for j in range(1, 4):
            for q in range(4):
                a.i('ds_write_b128 v%d, %s offset:%d' % (vRW + j - 1, v4(vACC + 16 * j + 4 * q), 1024 * q))
        a.i('s_waitcnt lgkmcnt(0)')
        a.i('s_barrier')
        for j in range(1, 4):
            for q in range(4):
                a.i('ds_read_b128 %s, v%d offset:%d' % (v4(vACC + 16 * j + 4 * q), vRR, 4096 * (j - 1) + 1024 * q))
        for j in range(1, 4):
            for r in range(16):
                a.i('v_add_f32 v%d, v%d, v%d' % (vACC + r, vACC + r, vACC + 16 * j + r))

    def ksplit_small(self, bufoff, pf_after_loads, pf_after_mfma):
        a = self.a
        a.i('s_add_u32 s%d, s%d, 0x%x' % (sT, sLB, bufoff))
        a.i('s_add_u32 s%d, s%d, s%d' % (sT + 1, sT, sBqx0))
        a.i('s_add_u32 s%d, s%d, s%d' % (sT + 2, sT, sBqx1))
        L0 = self.frag_loads(lambda j: vB + 8 * j, 'v', sT + 1, 8, sT + 3, ' sc1')
        L1 = self.frag_loads(lambda j: vB + 8 * j + 4, 'v', sT + 2, 8, sT + 4, ' sc1')
        for j in range(8):
            for x in L0[j] + L1[j]:
                a.i(x)
        self.pf(pf_after_loads)
        for ksl in range(8):
            for b in range(2):
                for w in range(2):
                    acc = vACC + 16 * (2 * w + b)
                    a.i('v_mfma_f32_32x32x16_bf16 v[%d:%d], %s, %s, %s' % (
                        acc, acc + 15, v4(vWS + 8 * ksl + 4 * w), v4(vB + 8 * ksl + 4 * b),
                        'v[%d:%d]' % (acc, acc + 15) if ksl else '0'))
        pf_after_mfma()
        self.reduce_scatter()

    def small_w_loads(self, delta):
        L = []
        pre = ['s_add_u32 s%d, s%d, 0x%x' % (sT + 10, sW1a, delta), 's_add_u32 s%d, s%d, 0x%x' % (sT + 11, sW1b, delta)]
        L0 = self.frag_loads(lambda j: vWS + 8 * j, 'v', sT + 10, 8, sT + 12)
        L1 = self.frag_loads(lambda j: vWS + 8 * j + 4, 'v', sT + 11, 8, sT + 13)
        for j in range(8):
            L.append((pre if j == 0 else []) + L0[j])
            L.append(L1[j])
        return L

    def w3_loads(self):
        return (self.frag_loads(lambda j: 4 * j, 'a', sW3a, 32, sT + 14) +
                self.frag_loads(lambda j: 128 + 4 * j, 'a', sW3b, 32, sT + 14))

    def w4_loads(self):
        L0 = self.frag_loads(lambda j: 8 * j, 'a', sW4a, 28, sT + 15)
        L1 = self.frag_loads(lambda j: 8 * j + 4, 'a', sW4b, 28, sT + 16)
        L = []
        for j in range(28):
            L.append(L0[j])
            L.append(L1[j])
        return L

    def gen(self):
        a = self.a
        name = 'main_kernel'
        a.raw(kernel_header(name))
        a.forget()
        a.i('s_cmp_ge_u32 s2, 256')
        a.i('s_cbranch_scc1 K1_end')
        a.i('s_load_dwordx2 s[4:5], s[0:1], %d' % KA['ws'])
        a.i('s_load_dwordx4 s[60:63], s[0:1], %d' % KA['out'])
        a.i('s_and_b32 s%d, s2, 7\ns_lshl_b32 s%d, s%d, 2\ns_lshr_b32 s3, s2, 6\ns_add_u32 s%d, s%d, s3' % (
            sC, sC, sC, sC, sC))
        a.i('s_lshr_b32 s%d, s2, 3\ns_and_b32 s%d, s%d, 7' % (sS, sS, sS))
        t = vT
        a.i('v_lshrrev_b32 v%d, 6, v0' % t)
        a.i('v_and_b32 v0, 63, v0')
        a.i('v_readfirstlane_b32 s%d, v%d' % (sW, t))
        a.i('v_lshlrev_b32 v%d, 4, v0' % vL16)
        a.i('s_mov_b32 s%d, 0x%x' % (sLB, LBASE))
        a.i('s_mov_b32 s%d, 0' % sPH)
        a.i('s_mov_b32 s%d, 400000' % sTO)
        a.i('s_mov_b32 s%d, %s' % (sC0, f32(GC0)))
        a.i('v_mov_b32 v%d, %s' % (vC1, f32(GC1)))
        w1, wh = sT, sT + 1
        a.i('s_and_b32 s%d, s%d, 1' % (w1, sW))
        a.i('s_lshr_b32 s%d, s%d, 1' % (wh, sW))
        a.i('s_lshl_b32 s%d, s%d, 3\ns_lshl_b32 s%d, s%d, 1\ns_add_u32 s%d, s%d, s%d' % (
            sT + 2, sS, sT + 3, sW, sT + 2, sT + 2, sT + 3))
        a.i('s_lshr_b32 s%d, s%d, 5' % (sT + 3, sT + 2))
        a.i('s_lshl_b32 s%d, s%d, 1\ns_add_u32 s%d, s%d, s%d' % (sT + 4, sC, sT + 3, sT + 3, sT + 4))
        a.i('s_lshl_b32 s%d, s%d, 15' % (sT + 3, sT + 3))
        a.i('s_and_b32 s%d, s%d, 31\ns_lshl_b32 s%d, s%d, 4\ns_add_u32 s%d, s%d, s%d' % (
            sT + 2, sT + 2, sT + 2, sT + 2, sT + 2, sT + 2, sT + 3))
        a.i('v_and_b32 v%d, 1, v0\nv_lshlrev_b32 v%d, 4, v%d' % (t, t, t))
        a.i('v_lshrrev_b32 v%d, 1, v0' % (t + 1))
        a.i('v_lshl_add_u32 v%d, v%d, 9, v%d' % (t, t + 1, t))
        a.i('v_add_u32 v%d, s%d, v%d' % (vRa, sT + 2, t))
        a.i('s_waitcnt lgkmcnt(0)')
        srd(a, 8, 4, WS_BYTES)
        srd(a, 12, 60, S * D * 2)
        a.i('s_mov_b32 s%d, 0x%x\ns_mov_b32 s%d, 0x%x' % (sT + 2, YAF, sT + 3, YAF + 16384))
        a.i('buffer_load_dwordx4 %s, v%d, s[8:11], s%d offen' % (v4(vY), vRa, sT + 2))
        a.i('buffer_load_dwordx4 %s, v%d, s[8:11], s%d offen' % (v4(vY + 4), vRa, sT + 3))
        c2 = sT + 4
        a.i('s_lshl_b32 s%d, s%d, 1' % (c2, sC))
        a.i('s_lshl_b32 s%d, s%d, 15\ns_lshl_b32 s%d, s%d, 13\ns_add_u32 s%d, s%d, s%d' % (
            sBq, c2, sT + 5, sW, sBq, sBq, sT + 5))
        a.i('s_lshl_b32 s%d, s%d, 15\ns_add_u32 s%d, s%d, s%d' % (sT + 5, w1, sBqx0, sBq, sT + 5))
        a.i('s_xor_b32 s%d, s%d, 32768\ns_add_u32 s%d, s%d, s%d' % (sT + 5, sT + 5, sBqx1, sBq, sT + 5))
        nto, ntx = sT + 6, sT + 7
        a.i('s_lshl_b32 s%d, s%d, 1\ns_add_u32 s%d, s%d, s%d\ns_xor_b32 s%d, s%d, 1' % (
            nto, sS, nto, nto, wh, ntx, nto))
        a.i('s_lshl_b32 s%d, s%d, 11' % (sHSo, nto))
        a.i('s_add_u32 s%d, s%d, s%d\ns_lshl_b32 s%d, s%d, 15\ns_add_u32 s%d, s%d, s%d' % (
            sOwn, c2, w1, sOwn, sOwn, sOwn, sOwn, sHSo))
        a.i('s_lshl_b32 s%d, s%d, 13\ns_add_u32 s%d, s%d, 0x%x' % (sT + 5, sW, sT + 5, sT + 5, WF1))
        a.i('s_lshl_b32 s%d, s%d, 15\ns_add_u32 s%d, s%d, s%d' % (sW1a, nto, sW1a, sW1a, sT + 5))
        a.i('s_lshl_b32 s%d, s%d, 15\ns_add_u32 s%d, s%d, s%d' % (sW1b, ntx, sW1b, sW1b, sT + 5))
        a.i('s_mul_i32 s%d, s%d, %d\ns_add_u32 s%d, s%d, 0x%x' % (sT + 5, sW, 28 * 1024, sT + 8, sT + 5, WF4))
        a.i('s_mul_i32 s%d, s%d, %d\ns_add_u32 s%d, s%d, s%d' % (sW4a, nto, 112 * 1024, sW4a, sW4a, sT + 8))
        a.i('s_mul_i32 s%d, s%d, %d\ns_add_u32 s%d, s%d, s%d' % (sW4b, ntx, 112 * 1024, sW4b, sW4b, sT + 8))
        a.i('s_add_u32 s%d, s%d, s%d\ns_mul_i32 s%d, s%d, %d\ns_add_u32 s%d, s%d, s%d' % (
            sT + 8, c2, w1, sH2x0, sT + 8, 112 * 1024, sH2x0, sH2x0, sT + 5))
        a.i('s_xor_b32 s%d, s%d, 1\ns_mul_i32 s%d, s%d, %d\ns_add_u32 s%d, s%d, s%d' % (
            sT + 8, sT + 8, sH2x1, sT + 8, 112 * 1024, sH2x1, sH2x1, sT + 5))
        a.i('s_mul_i32 s%d, s%d, 7\ns_lshl_b32 s%d, s%d, 1\ns_add_u32 s%d, s%d, s%d' % (
            sT + 8, sS, sT + 9, sW, sT + 8, sT + 8, sT + 9))
        a.i('s_mul_i32 s%d, s%d, %d\ns_add_u32 s%d, s%d, 0x%x' % (sW3a, sT + 8, KS3 * 1024, sW3a, sW3a, WF3))
        a.i('s_add_u32 s%d, s%d, %d' % (sW3b, sW3a, KS3 * 1024))
        a.i('s_cmp_eq_u32 s%d, 3' % sW)
        a.i('s_cselect_b32 s%d, 0x20000000, s%d' % (sW3b, sW3b))
        a.i('s_mul_i32 s%d, s%d, %d\ns_lshl_b32 s%d, s%d, 11\ns_add_u32 s%d, s%d, s%d' % (
            sH2o, c2, 112 * 1024, sT + 8, sT + 8, sH2o, sH2o, sT + 8))
        a.i('s_add_u32 s%d, s%d, %d\ns_add_u32 s%d, s%d, %d' % (sT + 8, sW3a, 32 * 1024, sT + 9, sW3b, 32 * 1024))
        a.i('buffer_load_dwordx4 %s, v%d, s[8:11], s%d offen' % (v4(vCS), vL16, sT + 8))
        a.i('buffer_load_dwordx4 %s, v%d, s[8:11], s%d offen' % (v4(vCS + 4), vL16, sT + 9))
        for j in range(1, 4):
            a.i('s_xor_b32 s%d, s%d, %d\ns_mul_i32 s%d, s%d, 12288\ns_add_u32 s%d, s%d, %d' % (
                sT + 8, sW, j, sT + 8, sT + 8, sT + 8, sT + 8, 4096 * (j - 1)))
            a.i('v_add_u32 v%d, s%d, v%d' % (vRW + j - 1, sT + 8, vL16))
        a.i('s_mul_i32 s%d, s%d, 12288' % (sT + 8, sW))
        a.i('v_add_u32 v%d, s%d, v%d' % (vRR, sT + 8, vL16))
        a.i('s_lshl_b32 s%d, s%d, 13' % (sT + 8, sW))
        a.i('v_add_u32 v%d, s%d, v%d' % (vG3W, sT + 8, vL16))
        a.i('s_lshr_b32 s%d, s%d, 2\ns_add_u32 s%d, s%d, 1' % (sT + 8, sS, sT + 8, sT + 8))
        a.i('s_sub_u32 s%d, 0, s%d' % (sT + 9, sT + 8))
        a.i('s_bitcmp1_b32 s%d, 1' % sS)
        a.i('s_cselect_b32 s%d, s%d, s%d' % (sT + 8, sT + 9, sT + 8))
        a.i('s_add_u32 s%d, s%d, s%d\ns_lshl_b32 s%d, s%d, 5' % (sT + 9, c2, w1, sT + 9, sT + 9))
        a.i('v_and_b32 v%d, 31, v0' % t)
        a.i('v_add_u32 v%d, s%d, v%d' % (t, sT + 9, t))
        a.i('v_lshrrev_b32 v%d, 5, v0' % (t + 2))
        a.i('v_lshlrev_b32 v%d, 10, v%d' % (vOUT, t))
        a.i('v_lshl_add_u32 v%d, v%d, 4, v%d' % (vOUT, t + 2, vOUT))
        a.i('s_lshl_b32 s%d, s%d, 6' % (sOutO, nto))
        a.i('v_add_u32 v%d, s%d, v%d' % (t, sT + 8, t))
        a.i('v_cmp_gt_u32 vcc, 2048, v%d' % t)
        a.i('v_cndmask_b32 v%d, 0, -1, vcc' % vHM)
        a.i('v_and_b32 v%d, 2047, v%d' % (t, t))
        a.i('v_lshrrev_b32 v%d, 5, v%d\nv_lshlrev_b32 v%d, 15, v%d' % (t + 1, t, t + 1, t + 1))
        a.i('v_and_b32 v%d, 31, v%d' % (t, t))
        a.i('v_lshl_add_u32 v%d, v%d, 4, v%d' % (t, t, t + 1))
        a.i('v_lshl_add_u32 v%d, v%d, 9, v%d' % (vHS, t + 2, t))
        a.i('s_lshl_b32 s%d, s%d, 7' % (sT + 8, sC))
        a.i('s_lshl_b32 s%d, s%d, 4\ns_add_u32 s%d, s%d, s%d' % (sT + 9, sS, sT + 9, sT + 9, sT + 8))
        a.i('v_mov_b32 v%d, s%d' % (vFL, sT + 9))
        a.i('v_and_b32 v%d, 7, v0\nv_lshlrev_b32 v%d, 4, v%d\nv_add_u32 v%d, s%d, v%d' % (t, t, t, vPA, sT + 8, t))
        a.i('s_lshl_b32 s%d, s%d, 5' % (sT + 9, sW))
        a.i('v_and_b32 v%d, 1, v0\nv_lshlrev_b32 v%d, 4, v%d\nv_add_u32 v%d, s%d, v%d' % (t, t, t, t, sT + 9, t))
        a.i('v_add_u32 v%d, s%d, v%d' % (vPB, sT + 8, t))
        a.i('s_lshl_b32 s%d, s%d, 1\ns_add_u32 s%d, s%d, s%d\ns_add_u32 s%d, s%d, 31\ns_and_b32 s%d, s%d, 31' % (
            sT + 9, w1, sT + 9, sT + 9, sC, sT + 9, sT + 9, sT + 9, sT + 9))
        a.i('s_lshl_b32 s%d, s%d, 7' % (sT + 9, sT + 9))
        a.i('v_add_u32 v%d, s%d, v%d' % (t, sT + 9, t))
        a.i('v_and_b32 v%d, 2, v0' % (t + 1))
        a.i('v_cmp_eq_u32 vcc, 0, v%d' % (t + 1))
        a.i('v_cndmask_b32 v%d, v%d, v%d, vcc' % (vPC, t, vPB))
        a.i('s_branch K1_x')

        a.label('K1_loop')
        self.poll(vPA)
        a.label('K1_x')
        a.forget()
        X, Yf, P = vB, vB + 16, vB + 32
        a.i('s_add_u32 s%d, s%d, %d' % (sT + 1, sLB, 16384))
        a.i('buffer_load_dwordx4 %s, v%d, s[8:11], s%d offen sc1' % (v4(P), vRa, sLB))
        a.i('buffer_load_dwordx4 %s, v%d, s[8:11], s%d offen sc1' % (v4(P + 4), vRa, sT + 1))
        self.pfq = self.small_w_loads(0) + self.w3_loads()
        self.pf(16)
        s1, s2 = vT, vT + 1
        self.unpack(X, P, 8)
        self.unpack(Yf, vY, 8)
        self.stats16(X, s1, s2)
        self.reduce2(s1, s2, vT + 2, vT + 3)
        self.ln_finish(s1, s2, None)
        for e in range(16):
            a.i('v_fma_f32 v%d, v%d, v%d, v%d' % (vT + 4 + (e & 3), X + e, s2, s1))
            a.i('v_fmac_f32 v%d, v%d, v%d' % (X + e, vT + 4 + (e & 3), Yf + e))
        self.pack(P, X, 8)

        def rstore(off, src):
            a.i('s_add_u32 s%d, s%d, 0x%x\ns_add_u32 s%d, s%d, 0x%x' % (sT, sLB, off, sT + 1, sLB, off + 16384))
            a.i('buffer_store_dwordx4 %s, v%d, s[8:11], s%d offen sc1' % (v4(src), vRa, sT))
            a.i('buffer_store_dwordx4 %s, v%d, s[8:11], s%d offen sc1' % (v4(src + 4), vRa, sT + 1))
        rstore(O_XP, P)
        self.stats16(X, s1, s2)
        self.reduce2(s1, s2, vT + 2, vT + 3)
        self.ln_finish(s1, s2, None)
        for e in range(16):
            a.i('v_fma_f32 v%d, v%d, v%d, v%d' % (X + e, X + e, s2, s1))
        self.pack(P + 8, X, 8)
        rstore(O_N, P + 8)
        self.stats16(X, s1, s2)
        self.reduce2(s1, s2, vT + 2, vT + 3)
        self.ln_finish(s1, s2, None)
        for e in range(16):
            a.i('v_fma_f32 v%d, v%d, v%d, v%d' % (X + e, X + e, s2, s1))
        self.pack(P + 16, X, 8)
        rstore(O_M, P + 16)
        self.publish()
        self.pf(12)

        self.poll(vPA)

        def after1():
            for g in self.small_w_loads(WF2 - WF1):
                for x in g:
                    a.i(x)
        self.ksplit_small(O_M, 16, after1)
        for x in self.gelu_block(vACC, 16, vT):
            a.i(x)
        self.pack(vACC + 16, vACC, 8)
        for p in range(8):
            a.i('v_and_b32 v%d, v%d, v%d' % (vACC + 16 + p, vACC + 16 + p, vHM))
        a.i('s_add_u32 s%d, s%d, 0x%x\ns_add_u32 s%d, s%d, s%d' % (sT, sLB, O_HS, sT, sT, sHSo))
        a.i('buffer_store_dwordx4 %s, v%d, s[8:11], s%d offen sc1' % (v4(vACC + 16), vHS, sT))
        a.i('buffer_store_dwordx4 %s, v%d, s[8:11], s%d offen offset:1024 sc1' % (v4(vACC + 20), vHS, sT))
        self.publish()
        a.i('s_add_u32 s%d, s%d, s%d' % (sT, sLB, sOwn))
        a.i('s_add_u32 s%d, s%d, 0x%x\ns_add_u32 s%d, s%d, 0x%x' % (sT + 1, sT, O_N, sT + 2, sT, O_XP))
        for t2 in range(2):
            a.i('buffer_load_dwordx4 %s, v%d, s[8:11], s%d offen offset:%d sc1' % (v4(vRES + 4 * t2), vL16, sT + 1, 1024 * t2))
            a.i('buffer_load_dwordx4 %s, v%d, s[8:11], s%d offen offset:%d sc1' % (v4(vRES + 8 + 4 * t2), vL16, sT + 2, 1024 * t2))
        self.pf(10)

        self.poll(vPC)
        self.ksplit_small(O_HS, 14, lambda: None)
        self.unpack(vACC + 16, vRES, 8)
        self.unpack(vACC + 32, vRES + 8, 8)
        for r in range(16):
            a.i('v_add_f32 v%d, v%d, v%d' % (vACC + r, vACC + r, vACC + 16 + r))
        self.pack(vACC + 48, vACC, 8)
        a.i('s_add_u32 s%d, s%d, 0x%x\ns_add_u32 s%d, s%d, s%d' % (sT, sLB, O_A1, sT, sT, sOwn))
        a.i('buffer_store_dwordx4 %s, v%d, s[8:11], s%d offen sc1' % (v4(vACC + 48), vL16, sT))
        a.i('buffer_store_dwordx4 %s, v%d, s[8:11], s%d offen offset:1024 sc1' % (v4(vACC + 52), vL16, sT))
        for r in range(16):
            a.i('v_add_f32 v%d, v%d, v%d' % (vRES + r, vACC + r, vACC + 32 + r))
        self.publish()
        self.pf(100)

        self.poll(vPB)
        a.i('s_add_u32 s%d, s%d, 0x%x\ns_add_u32 s%d, s%d, s%d\ns_add_u32 s%d, s%d, 32768' % (
            sT, sLB, O_A1, sT + 1, sT, sBq, sT + 2, sT + 1))
        L0 = self.frag_loads(lambda j: vB + 4 * j, 'v', sT + 1, 8, sT + 3, ' sc1')
        L1 = self.frag_loads(lambda j: vB + 32 + 4 * j, 'v', sT + 2, 8, sT + 4, ' sc1')
        for g in L0 + L1:
            for x in g:
                a.i(x)
        one = vT + 8
        a.i('v_mov_b32 v%d, 0x3f803f80' % one)
        for q in range(4):
            a.i('v_mov_b32 v%d, 0' % (vT + q))
        for T in range(2):
            for j in range(8):
                b = vB + 32 * T + 4 * j
                a.i('ds_write_b128 v%d, %s offset:%d' % (vG3W, v4(b), 32768 * T + 1024 * j))
                for p in range(4):
                    a.i('v_dot2c_f32_bf16 v%d, v%d, v%d' % (vT + T, b + p, one))
                    a.i('v_dot2c_f32_bf16 v%d, v%d, v%d' % (vT + 2 + T, b + p, b + p))
        a.i('v_permlane32_swap_b32 v%d, v%d' % (vT, vT + 1))
        a.i('v_permlane32_swap_b32 v%d, v%d' % (vT + 2, vT + 3))
        a.i('v_add_f32 v%d, v%d, v%d' % (vT + 4, vT, vT + 1))
        a.i('v_add_f32 v%d, v%d, v%d' % (vT + 5, vT + 2, vT + 3))
        a.i('s_lshl_b32 s%d, s%d, 3' % (sT, sW))
        a.i('v_lshlrev_b32 v%d, 1, v%d' % (vT + 6, vL16))
        a.i('v_add_u32 v%d, s%d, v%d' % (vT + 7, sT, vT + 6))
        a.i('ds_write_b64 v%d, v[%d:%d] offset:%d' % (vT + 7, vT + 4, vT + 5, L_STAT - 1024 + 1024) if False else
            'v_add_u32 v%d, %d, v%d' % (vT + 7, L_STAT, vT + 7))
        a.i('v_add_u32 v%d, %d, v%d' % (vT + 6, L_STAT, vT + 6))
        a.i('ds_write_b64 v%d, v[%d:%d]' % (vT + 7, vT + 4, vT + 5))
        a.i('s_waitcnt lgkmcnt(0)')
        a.i('s_barrier')
        RING, NR = vB, 8
        MU = vB + 32
        RS = vB + 40
        ST = vB + 44
        PK = vB + 52
        stat = []
        stat.append('ds_read_b128 %s, v%d' % (v4(ST), vT + 6))
        stat.append('ds_read_b128 %s, v%d offset:16' % (v4(ST + 4), vT + 6))
        stat += ['v_add_f32 v%d, v%d, v%d' % (ST, ST, ST + 2), 'v_add_f32 v%d, v%d, v%d' % (ST + 1, ST + 1, ST + 3),
                 'v_add_f32 v%d, v%d, v%d' % (ST + 4, ST + 4, ST + 6), 'v_add_f32 v%d, v%d, v%d' % (ST + 5, ST + 5, ST + 7),
                 'v_add_f32 v%d, v%d, v%d' % (ST, ST, ST + 4), 'v_add_f32 v%d, v%d, v%d' % (ST + 1, ST + 1, ST + 5),
                 'v_mul_f32 v%d, %s, v%d' % (ST, f32(-1.0 / 512), ST),
                 'v_mul_f32 v%d, %s, v%d' % (ST + 1, f32(1.0 / 512), ST + 1),
                 'v_fma_f32 v%d, -v%d, v%d, v%d' % (ST + 1, ST, ST, ST + 1),
                 'v_max_f32 v%d, 0, v%d' % (ST + 1, ST + 1),
                 'v_add_f32 v%d, %s, v%d' % (ST + 1, f32(1e-5), ST + 1),
                 'v_rsq_f32 v%d, v%d' % (RS, ST + 1),
                 'v_cvt_pk_bf16_f32 v%d, v%d, v%d' % (ST + 2, ST, ST),
                 'v_and_b32 v%d, 0xffff0000, v%d' % (ST + 2, ST + 2),
                 'v_sub_f32 v%d, v%d, v%d' % (ST + 3, ST, ST + 2),
                 'v_cvt_pk_bf16_f32 v%d, v%d, v%d' % (MU, ST + 2, ST + 3),
                 'v_mov_b32 v%d, v%d' % (MU + 4, MU),
                 'v_mov_b32 v%d, v%d' % (RS + 1, RS),
                 'v_permlane32_swap_b32 v%d, v%d' % (MU, MU + 4),
                 'v_permlane32_swap_b32 v%d, v%d' % (RS, RS + 1),
                 'v_mov_b32 v%d, v%d' % (MU + 1, MU), 'v_mov_b32 v%d, v%d' % (MU + 5, MU + 4),
                 'v_mov_b32 v%d, 0' % (MU + 2), 'v_mov_b32 v%d, 0' % (MU + 3),
                 'v_mov_b32 v%d, 0' % (MU + 6), 'v_mov_b32 v%d, 0' % (MU + 7)]
        a.i('s_add_u32 s%d, s%d, 0x%x\ns_add_u32 s%d, s%d, s%d\ns_add_u32 s%d, s%d, %d' % (
            sT, sLB, O_H2, sT, sT, sH2o, sT + 1, sT, 112 * 1024))

        def epi(ft, T):
            acc = vACC + 16 * (2 * ft + T)
            L = self.gelu_block(acc, 16, vT, pre=lambda z: 'v_mul_f32 v%d, v%d, v%d' % (z, z, RS + T))
            for p in range(8):
                L.append('v_cvt_pk_bf16_f32 v%d, v%d, v%d' % (PK + p, acc + 2 * p, acc + 2 * p + 1))
            for t2 in range(2):
                L.append('buffer_store_dwordx4 %s, v%d, s[8:11], s%d offen offset:%d sc1' % (
                    v4(PK + 4 * t2), vL16, sT + T, 2048 * ft + 1024 * t2))
            return L

        w4 = self.w4_loads()
        rd = lambda T, ks, n: 'ds_read_b128 %s, v%d offset:%d' % (v4(RING + 4 * (n % NR)), vL16, 32768 * T + 1024 * ks)
        AHEAD = 6

        def tile_pair(ft, first_filler, nxt_T0):
            seq = [(T, ks) for T in range(2) for ks in range(32)]
            filler = list(first_filler)
            for n, (T, ks) in enumerate(seq):
                acc = vACC + 16 * (2 * ft + T)
                if n + AHEAD < 64:
                    a.i(rd(seq[n + AHEAD][0], seq[n + AHEAD][1], n + AHEAD))
                elif nxt_T0:
                    a.i(rd(0, n + AHEAD - 64, n + AHEAD))
                a.i('v_mfma_f32_32x32x16_bf16 v[%d:%d], %s, %s, %s' % (
                    acc, acc + 15, v4(128 * ft + 4 * ks, 'a'), v4(RING + 4 * (n % NR)),
                    'v[%d:%d]' % (acc, acc + 15) if ks else '0'))
                if T == 1 and w4:
                    for x in w4.pop(0):
                        a.i(x)
                if ks == 31:
                    while filler:
                        a.i(filler.pop(0))
                    a.i('v_mfma_f32_32x32x16_bf16 v[%d:%d], %s, %s, v[%d:%d]' % (
                        acc, acc + 15, v4(vCS + 4 * ft), v4(MU + 4 * T), acc, acc + 15))
                    filler = epi(ft, T)
                elif ks >= 1:
                    for _ in range(5):
                        if filler:
                            a.i(filler.pop(0))
            return filler

        for n in range(AHEAD):
            a.i(rd(0, n, n))
        left = tile_pair(0, stat, True)
        w4rest = [list(g) for g in w4]
        a.i('s_cmp_eq_u32 s%d, 3' % sW)
        a.i('s_cbranch_scc1 K1_g3w3')
        sv = (list(a.vm), list(a.lg))
        left2 = tile_pair(1, left, False)
        for x in left2:
            a.i(x)
        a.i('s_branch K1_g3done')
        a.label('K1_g3w3')
        a.vm, a.lg = sv
        for g in w4rest:
            for x in g:
                a.i(x)
        for x in left:
            a.i(x)
        a.label('K1_g3done')
        a.i('s_waitcnt lgkmcnt(0)')
        self.publish()

        self.poll(vPB)
        a.i('s_add_u32 s%d, s%d, 0x%x' % (sT, sLB, O_H2))
        a.i('s_add_u32 s%d, s%d, s%d\ns_add_u32 s%d, s%d, s%d' % (sT + 1, sT, sH2x0, sT + 2, sT, sH2x1))
        WIN = 16
        L0 = self.frag_loads(lambda j: vB + 8 * (j % WIN), 'v', sT + 1, 28, sT + 3, ' sc1')
        L1 = self.frag_loads(lambda j: vB + 8 * (j % WIN) + 4, 'v', sT + 2, 28, sT + 4, ' sc1')
        for j in range(WIN):
            for x in L0[j] + L1[j]:
                a.i(x)
        for ksl in range(28):
            for b in range(2):
                for w in range(2):
                    acc = vACC + 16 * (2 * w + b)
                    a.i('v_mfma_f32_32x32x16_bf16 v[%d:%d], %s, %s, %s' % (
                        acc, acc + 15, v4(8 * ksl + 4 * w, 'a'), v4(vB + 8 * (ksl % WIN) + 4 * b),
                        'v[%d:%d]' % (acc, acc + 15) if ksl else '0'))
            if ksl + WIN < 28:
                for x in L0[ksl + WIN] + L1[ksl + WIN]:
                    a.i(x)
        self.reduce_scatter()
        for r in range(16):
            a.i('v_add_f32 v%d, v%d, v%d' % (vACC + r, vACC + r, vRES + r))
        self.pack(vACC + 16, vACC, 8)
        a.i('s_cmp_lg_u32 s%d, 0x%x' % (sLB, LBASE))
        a.i('s_cbranch_scc1 K1_final')
        a.i('s_add_u32 s%d, s%d, 0x%x' % (sLB, sLB, LSTRIDE))
        a.i('s_add_u32 s%d, s%d, s%d' % (sT, sLB, sOwn))
        a.i('buffer_store_dwordx4 %s, v%d, s[8:11], s%d offen sc1' % (v4(vACC + 16), vL16, sT))
        a.i('buffer_store_dwordx4 %s, v%d, s[8:11], s%d offen offset:1024 sc1' % (v4(vACC + 20), vL16, sT))
        self.publish()
        a.i('s_branch K1_loop')
        a.label('K1_final')
        for t2 in range(2):
            b = vACC + 16 + 4 * t2
            a.i('v_permlane32_swap_b32 v%d, v%d' % (b, b + 2))
            a.i('v_permlane32_swap_b32 v%d, v%d' % (b + 1, b + 3))
            a.i('buffer_store_dwordx4 %s, v%d, s[12:15], s%d offen offset:%d' % (v4(b), vOUT, sOutO, 32 * t2))
        a.i('s_endpgm')
        a.label('K1_timeout')
        a.i('v_mov_b32 v%d, 0\nv_mov_b32 v%d, s%d' % (vT, vT + 1, sPH))
        a.i('v_or_b32 v%d, 0x1000, v%d' % (vT + 1, vT + 1))
        a.i('global_store_dword v%d, v%d, s[62:63]' % (vT, vT + 1))
        a.label('K1_end')
        a.i('s_endpgm')
        return name, 256, 256


def main(path):
    a = Asm()
    hdr = [l for l in open('cdna_kernels/%s.s.ref' % KN).read().split('\n') if l.startswith(';') and '@launch' not in l and 'Override' not in l and 'grid=ceil' not in l]
    for l in hdr:
        a.raw(l)
    a.raw('; @launch kernel=prep_kernel grid=(256,1,1) block=(256,1,1) lds=0')
    a.raw('; @launch kernel=conv_kernel grid=(%d,1,1) block=(256,1,1) lds=%d' % (K0B_GRID, 33792))
    a.raw('; @launch kernel=main_kernel grid=(256,1,1) block=(256,1,1) lds=%d' % K1_LDS)
    a.raw('.amdgcn_target "amdgcn-amd-amdhsa--gfx950"\n.text')
    ks = [gen_k0a(a), gen_k0b(a), K1(a).gen()]
    a.raw('.section .rodata,"a"')
    for n, v, ag in ks:
        a.raw(kernel_desc(n, v, ag))
    open(path, 'w').write(a.text())


if __name__ == '__main__':
    main(sys.argv[1] if len(sys.argv) > 1 else 'cdna_kernels/%s.s' % KN)
```

```python
import re

REG_RE = re.compile(r'^(-|\|)?(abs\()?([vas])(\d+|\[(\d+):(\d+)\])\)?\|?$')


def parse_reg(tok):
    tok = tok.strip()
    if tok in ('vcc',):
        return [('s', 'vcc_lo'), ('s', 'vcc_hi')]
    if tok in ('vcc_lo', 'vcc_hi', 'm0', 'exec_lo', 'exec_hi', 'scc'):
        return [('s', tok)]
    if tok == 'exec':
        return [('s', 'exec_lo'), ('s', 'exec_hi')]
    m = REG_RE.match(tok)
    if not m:
        return []
    k = m.group(3)
    if m.group(5) is not None:
        return [(k, i) for i in range(int(m.group(5)), int(m.group(6)) + 1)]
    return [(k, int(m.group(4)))]


def split_ops(s):
    out, depth, cur = [], 0, ''
    for ch in s:
        if ch in '[(':
            depth += 1
        if ch in '])':
            depth -= 1
        if ch == ',' and depth == 0:
            out.append(cur.strip())
            cur = ''
        else:
            cur += ch
    if cur.strip():
        out.append(cur.strip())
    return out


TRANS = ('v_exp_f32', 'v_log_f32', 'v_rcp_f32', 'v_rsq_f32', 'v_sqrt_f32', 'v_sin_f32', 'v_cos_f32',
         'v_rcp_iflag_f32')
NODST_S = ('s_cmp', 's_cbranch', 's_branch', 's_waitcnt', 's_barrier', 's_nop', 's_endpgm', 's_setprio',
           's_sleep', 's_bitcmp', 's_setpc', 's_setreg', 's_sendmsg')


class Ins:
    __slots__ = ('text', 'mn', 'dst', 'src', 'cls', 'passes', 'srcc', 'srcab', 'wide_store_data', 'dpp',
                 'mods')


def classify(text):
    t = text.split(';')[0].strip()
    parts = t.split(None, 1)
    mn = parts[0]
    rest = parts[1] if len(parts) > 1 else ''
    ops = split_ops(rest)
    mods = ''
    if ops:
        last = ops[-1]
        sp = last.split(None, 1)
        ops[-1] = sp[0]
        mods = sp[1] if len(sp) > 1 else ''
    I = Ins()
    I.text, I.mn, I.mods = text, mn, mods
    I.dst, I.src, I.passes, I.srcc, I.srcab, I.wide_store_data, I.dpp = [], [], 0, [], [], [], False
    R = [parse_reg(o) for o in ops]
    flat = lambda L: [x for l in L for x in l]
    base = mn
    for suf in ('_e32', '_e64', '_dpp', '_sdwa'):
        if base.endswith(suf):
            base = base[:-len(suf)]
    if mn.startswith('v_mfma'):
        I.cls = 'mfma'
        I.dst = R[0]
        I.srcab = R[1] + R[2]
        I.srcc = R[3]
        I.src = I.srcab + I.srcc
        I.passes = 8 if ('32x32x16' in mn or '32x32x8' in mn) else 4 if '16x16x32' in mn else None
        assert I.passes, mn
    elif mn.startswith('v_'):
        I.cls = 'trans' if base in TRANS else 'valu'
        I.dpp = mn.endswith('_dpp') or 'row_' in mods or 'quad_perm' in mods or 'wave_' in mods
        if base.startswith('v_permlane') and 'swap' in base:
            I.dst = R[0] + R[1]
            I.src = R[0] + R[1]
            I.cls = 'permlane'
        elif base.startswith('v_cmpx'):
            raise ValueError('no v_cmpx')
        elif base.startswith('v_cmp'):
            I.dst = R[0]
            I.src = flat(R[1:])
        elif base in ('v_add_co_u32', 'v_sub_co_u32', 'v_subrev_co_u32', 'v_addc_co_u32', 'v_subb_co_u32',
                      'v_mad_u64_u32', 'v_div_scale_f32'):
            I.dst = R[0] + R[1]
            I.src = flat(R[2:])
        elif base in ('v_readfirstlane_b32', 'v_readlane_b32'):
            I.dst = R[0]
            I.src = flat(R[1:])
            I.cls = 'readlane'
        elif base in ('v_fmac_f32', 'v_dot2c_f32_bf16', 'v_writelane_b32', 'v_pk_fmac_f16'):
            I.dst = R[0]
            I.src = flat(R)
        elif base == 'v_nop':
            pass
        else:
            I.dst = R[0]
            I.src = flat(R[1:])
            if I.dpp or mn.endswith('_sdwa'):
                I.src = I.src + R[0]
        if base.startswith('v_dot2'):
            I.cls = 'dot'
    elif mn.startswith('s_load') or mn.startswith('s_buffer_load') or mn.startswith('s_memtime') or \
            mn.startswith('s_memrealtime'):
        I.cls = 'smem'
        I.dst = R[0]
        I.src = flat(R[1:])
    elif mn.startswith('s_'):
        I.cls = 'salu'
        if mn.startswith(NODST_S):
            I.src = flat(R)
        else:
            I.dst = R[0]
            I.src = flat(R[1:])
            if 'saveexec' in mn:
                I.dst = I.dst + parse_reg('exec')
            if mn in ('s_addk_i32', 's_mulk_i32'):
                I.src = I.src + R[0]
    elif mn.startswith('global_load_lds') or (mn.startswith('buffer_load') and ' lds' in (' ' + mods)):
        I.cls = 'vmem_dma'
        I.src = flat(R) + [('s', 'm0')]
    elif mn.startswith('global_load') or mn.startswith('buffer_load'):
        I.cls = 'vmem_load'
        I.dst = R[0]
        I.src = flat(R[1:])
        if 'd16' in mn:
            I.src = I.src + R[0]
    elif mn.startswith('global_store'):
        I.cls = 'vmem_store'
        I.src = flat(R)
        if 'x3' in mn or 'x4' in mn:
            I.wide_store_data = R[1]
    elif mn.startswith('buffer_store'):
        I.cls = 'vmem_store'
        I.src = flat(R)
        if 'x3' in mn or 'x4' in mn:
            I.wide_store_data = R[0]
    elif mn.startswith('global_atomic'):
        I.cls = 'vmem_load' if 'sc0' in mods else 'vmem_store'
        if 'sc0' in mods:
            I.dst = R[0]
            I.src = flat(R[1:])
        else:
            I.src = flat(R)
    elif mn in ('buffer_inv', 'buffer_wbl2'):
        I.cls = 'vmem_store'
    elif mn.startswith('ds_read') or mn.startswith('ds_bpermute') or mn.startswith('ds_permute') or \
            mn.startswith('ds_swizzle'):
        I.cls = 'ds_load'
        I.dst = R[0]
        I.src = flat(R[1:])
        if 'd16' in mn:
            I.src = I.src + R[0]
    elif mn.startswith('ds_'):
        I.cls = 'ds_store'
        I.src = flat(R)
    else:
        raise ValueError('unknown instr ' + text)
    if base == 'v_cndmask_b32' and len(ops) == 3:
        I.src = I.src + parse_reg('vcc')
    return I


VALU_LIKE = ('valu', 'trans', 'permlane', 'readlane', 'dot')


class Asm:
    def __init__(self):
        self.out = []
        self.hist = []
        self.vm = []
        self.lg = []
        self.nlab = 0
        self.auto_wait = True
        self.maxv = -1
        self.maxa = -1
        self.maxs = -1
        self.ninstr = 0
        self.ool = []

    def raw(self, s):
        self.out.append(s)

    def comment(self, s):
        self.out.append('    ; ' + s)

    def newlabel(self, p='L'):
        self.nlab += 1
        return '%s_%d' % (p, self.nlab)

    def label(self, name, drain=True):
        if drain:
            self.flush_state()
        self.out.append(name + ':')

    def flush_state(self):
        need = 0
        d = 0
        for I, st in reversed(self.hist):
            if I.cls == 'mfma':
                need = max(need, (12 if I.passes == 8 else 8) - d)
            elif I.cls in VALU_LIKE:
                need = max(need, 5 - d)
            elif I.cls == 'vmem_store':
                need = max(need, 2 - d)
            elif I.cls == 'salu':
                need = max(need, 1 - d)
            d += st
            if d > 20:
                break
        if need > 0:
            self.nop(need)

    def nop(self, n):
        while n > 0:
            k = min(n, 16)
            self._emit(classify('s_nop %d' % (k - 1)), k)
            n -= k

    def _emit(self, I, states=1):
        self.out.append('    ' + I.text)
        self.hist.append((I, states))
        self.ninstr += 1
        if len(self.hist) > 40:
            self.hist = self.hist[-30:]

    def wait(self, vm=None, lgkm=None):
        s = []
        if vm is not None:
            vm = min(vm, 63)
            s.append('vmcnt(%d)' % vm)
            if len(self.vm) > vm:
                self.vm = self.vm[len(self.vm) - vm:] if vm > 0 else []
        if lgkm is not None:
            lgkm = min(lgkm, 15)
            s.append('lgkmcnt(%d)' % lgkm)
            if len(self.lg) > lgkm:
                self.lg = self.lg[len(self.lg) - lgkm:] if lgkm > 0 else []
        self._emit(classify('s_waitcnt ' + ' '.join(s)))

    def forget(self):
        self.vm = []
        self.lg = []

    def _auto_wait(self, I):
        touched = set(I.src) | set(I.dst)
        vmn = None
        for idx, d in enumerate(self.vm):
            if d & touched:
                vmn = len(self.vm) - 1 - idx
        lgn = None
        for idx, (k, d) in enumerate(self.lg):
            if d & touched:
                lgn = len(self.lg) - 1 - idx
        if lgn is not None and any(k == 'smem' for k, d in self.lg):
            lgn = 0
        if vmn is not None or lgn is not None:
            self.wait(vm=vmn, lgkm=lgn)

    def _hazard(self, I):
        need = 0
        d = 0
        src, dst = set(I.src), set(I.dst)
        vsrc = {r for r in src if r[0] in 'va'}
        ssrc = {r for r in src if r[0] == 's'}
        for P, st in reversed(self.hist):
            if d > 20:
                break
            pd = set(P.dst)
            req = 0
            if P.cls == 'mfma':
                big = P.passes == 8
                if I.cls == 'mfma':
                    if pd & set(I.srcab):
                        req = max(req, 12 if big else 8)
                    if pd & set(I.srcc):
                        if P.dst == I.srcc and P.passes == I.passes:
                            pass
                        else:
                            req = max(req, 10 if big else 6)
                    elif pd & dst:
                        req = max(req, 12 if big else 8)
                else:
                    if pd & (src | dst):
                        req = max(req, 12 if big else 8)
                    if I.cls in VALU_LIKE and set(P.srcc) & dst:
                        req = max(req, 7 if big else 3)
                    if I.cls in ('vmem_load', 'ds_load') and set(P.srcc) & dst:
                        req = max(req, 7 if big else 3)
            elif P.cls in VALU_LIKE:
                pv = {r for r in pd if r[0] in 'va'}
                ps = {r for r in pd if r[0] == 's'}
                if I.cls == 'mfma' and pv & src:
                    req = max(req, 3 if P.cls == 'dot' else 2)
                if P.cls == 'dot' and pv & (src | dst):
                    if I.cls == 'dot' and I.mn == P.mn and not (pv & set(I.src[1:] if 'dot2c' in I.mn else I.src[:-1])):
                        pass
                    else:
                        req = max(req, 3)
                if I.cls in VALU_LIKE:
                    if I.dpp and pv & vsrc:
                        req = max(req, 2)
                    if I.cls == 'permlane' and pv & vsrc:
                        req = max(req, 2)
                    if I.cls == 'readlane' and pv & vsrc:
                        req = max(req, 1)
                    if P.cls == 'trans' and I.cls != 'trans' and pv & vsrc:
                        req = max(req, 1)
                    if P.cls == 'trans' and I.cls == 'trans' and pv & vsrc:
                        req = max(req, 1)
                    if ps & ssrc:
                        req = max(req, 4 if I.cls == 'readlane' or I.mn.startswith('v_writelane') else 2)
                    if (P.mn.endswith('_sdwa') or ('op_sel' in P.mods and not P.mn.startswith('v_pk_'))) and pv & (vsrc | dst):
                        req = max(req, 1)
                if I.cls.startswith('vmem') and ps & ssrc:
                    req = max(req, 5)
                if I.cls in ('salu', 'smem') and ps & ssrc:
                    req = max(req, 2)
                if P.cls == 'trans' and (I.cls.startswith('vmem') or I.cls.startswith('ds')) and pv & vsrc:
                    req = max(req, 1)
            elif P.cls == 'vmem_store' and P.wide_store_data:
                if set(P.wide_store_data) & dst:
                    req = max(req, 2)
            elif P.cls == 'salu':
                if ('s', 'm0') in pd and I.cls == 'vmem_dma':
                    req = max(req, 1)
            if req - d > need:
                need = req - d
            d += st
        if need > 0:
            self.nop(need)

    def i(self, text):
        for line in text.strip().split('\n'):
            line = line.strip()
            if not line or line.startswith(';'):
                continue
            I = classify(line)
            if line.endswith('; dummy'):
                I.dst = []
            for k, r in I.dst + I.src:
                if isinstance(r, int):
                    if k == 'v':
                        self.maxv = max(self.maxv, r)
                    elif k == 'a':
                        self.maxa = max(self.maxa, r)
                    else:
                        self.maxs = max(self.maxs, r)
            if I.mn == 's_waitcnt':
                vm = re.search(r'vmcnt\((\d+)\)', line)
                lg = re.search(r'lgkmcnt\((\d+)\)', line)
                self.wait(vm=int(vm.group(1)) if vm else None, lgkm=int(lg.group(1)) if lg else None)
                continue
            if I.mn == 's_nop':
                self._emit(I, int(line.split()[1], 0) + 1)
                continue
            if self.auto_wait:
                self._auto_wait(I)
            if I.mn.startswith('s_cbranch') or I.mn.startswith('s_branch'):
                self.flush_state()
            self._hazard(I)
            self._emit(I)
            if I.cls.startswith('vmem'):
                self.vm.append(set(I.dst))
                if len(self.vm) > 63:
                    pass
            elif I.cls in ('ds_load', 'ds_store'):
                self.lg.append(('ds', set(I.dst)))
            elif I.cls == 'smem':
                self.lg.append(('smem', set(I.dst)))

    def rawbr(self, text):
        I = classify(text)
        self._hazard(I)
        self._emit(I)

    def alt(self, cond, br, fast, slow):
        ls, lr = self.newlabel('OOL'), self.newlabel('RET')
        if cond:
            self.i(cond)
        for x in list(fast) + list(slow):
            I = classify(x)
            if I.mn not in ('s_waitcnt', 's_nop'):
                self._auto_wait(I)
        self.rawbr('%s %s' % (br, ls))
        sv = (list(self.hist), list(self.vm), list(self.lg), self.out)
        self.out = []
        self.out.append(ls + ':')
        for x in slow:
            self.i(x)
        self.flush_state()
        self._emit(classify('s_branch %s' % lr))
        self.ool.extend(self.out)
        self.hist, self.vm, self.lg, self.out = sv
        for x in fast:
            self.i(x)
        self.out.append(lr + ':')

    def emit_ool(self):
        self.out.extend(self.ool)
        self.ool = []

    def text(self):
        return '\n'.join(self.out) + '\n'


def kernel_header(name):
    return ('.globl %s\n.p2align 8\n.type %s,@function\n%s:' % (name, name, name))


def kernel_desc(name, vgpr, agpr=0, sgpr=102, wgy=False):
    acc = (vgpr + 3) // 4 * 4
    if acc > 256:
        raise ValueError('too many vgprs')
    nfv = acc + agpr if agpr else vgpr
    s = '''.p2align 6
.amdhsa_kernel %s
  .amdhsa_next_free_vgpr %d
  .amdhsa_next_free_sgpr %d
  .amdhsa_accum_offset %d
  .amdhsa_group_segment_fixed_size 0
  .amdhsa_kernarg_size 112
  .amdhsa_user_sgpr_count 2
  .amdhsa_user_sgpr_kernarg_segment_ptr 1
  .amdhsa_system_sgpr_workgroup_id_x 1
''' % (name, nfv, sgpr, acc)
    if wgy:
        s += '  .amdhsa_system_sgpr_workgroup_id_y 1\n'
    s += '.end_amdhsa_kernel\n'
    return s
```

```python
import sys
import struct
from asmgen import *

KN = 'interleave_layers__ssm_conv_h3__mixer_s_mlp__prompt'
S, D, F = 2048, 512, 1792

GSZ = 0x200000
O_XA = 0x0
O_HS0 = 0x40000
O_HS1 = 0x80000
O_H2 = 0xC0000
O_KVT = 0xC0000
O_ST = 0x1A0000
O_XC = 0x1A8000
O_KF = O_XC + 0x200
O_Z = 0x1C0000
O_SG = O_Z
O_HB = O_Z + 0x10000
O_FL = O_Z + 0x18000
YB = 0x1000000
WF1 = 0x1200000
WF2 = 0x1280000
WF3 = 0x1300000
CSP = 0x14C0000
WF4 = 0x1500000
EPO = 0x1700000
RF = 0x1710000
TAGC = 0x9E3779B0
WS_BYTES = 268435456
OOB = 0x40000000

STAMP = False
STOP = 0
FORCE_SLOW = False
RFCC = 2
AHEAD_LD = 6
STAMP_OFF = 0x8000000
STAMP_GROUPS = [[(0, 256)]]

KA = dict(q=0, k=8, v=16, sk=24, ssm_k=32, ssm_D=40, bx=48, w1=56, w2=64, w3=72, w4=80, out=88, dbg=96, ws=104)

LDS_BYTES = 163840
L_RS = 131072
CV_KVR = 0
CV_KVS = 4608
CV_E = 9216
CV_OOFF = 4160
CV_CHS = 8320

GC0 = -2.0 * 1.4426950408889634 * 0.7978845608028654
GC1 = GC0 * 0.044715
EPS = 1e-5


def f32(x):
    return '0x%08x' % struct.unpack('<I', struct.pack('<f', x))[0]


def v4(i, k='v'):
    return '%s[%d:%d]' % (k, i, i + 3)


def v2(i, k='v'):
    return '%s[%d:%d]' % (k, i, i + 1)


def v16(i):
    return 'v[%d:%d]' % (i, i + 15)


rDBG, rWS, rOUT, rK, rV, rSK, rSSM, rWSRC, rW2, rQ = 4, 8, 12, 16, 20, 24, 28, 32, 36, 40
WS = 's[8:11]'
(sW, sMode, sPH, sTO, sLay, sOwnXA, sOwnST, sSTld, sBx0, sBx1, sHSb, sHSo, sW1a, sW1b, sW4a, sW4b, sA3, sST3,
 sH2o, sH2o3, sH2x0, sH2x1, sFA, sFB, sHaloP, sSelLo, sSelHi, sGB, sHBo, sTag) = range(44, 74)
sHM = 74
sKW = 76
sDp = 84
sT = 76
sP = 86
vL16, vRB, vHS, vHB, vHL, vPA, vPC, vP3, vP4 = 1, 2, 3, 4, 5, 6, 7, 8, 9
vCS1 = 10
vMU = 12
vHLd = 14
vT = 16
vX = 32
vY = 48
vRN = 56
vK = 58
vIR = 60
vACC = 64
vB = 128
vWS = 192
aCS = 224
aRING = 232
NRING = 6


class Gen:
    def __init__(self):
        self.a = Asm()
        self.nst = 0
        self.names = []

    def stamp(self, name, real=False):
        if STAMP:
            a = self.a
            a.i('%s s[100:101]' % ('s_memrealtime' if real else 's_memtime'))
            a.i('s_waitcnt lgkmcnt(0)')
            a.i('s_mov_b32 s99, m0\ns_mov_b32 m0, s98')
            a.i('v_writelane_b32 v31, s100, m0')
            a.i('s_mov_b32 m0, s99')
            a.i('s_add_u32 s98, s98, 1')
            self.names.append(name)

    def dump(self):
        if STAMP:
            a = self.a
            self.stamp('end')
            a.i('s_waitcnt vmcnt(0)')
            self.stamp('drain')
            self.stamp('r', True)
            a.i('s_lshl_b32 s99, s2, 2')
            a.i('s_add_u32 s99, s99, s%d' % sW)
            a.i('s_lshl_b32 s99, s99, 9')
            a.i('s_add_u32 s99, s99, 0x%x' % STAMP_OFF)
            a.i('v_lshlrev_b32 v30, 2, v0')
            a.i('buffer_store_dword v63, v30, %s, s99 offen' % WS)
            a.i('buffer_store_dword v31, v30, %s, s99 offen offset:256' % WS)

    def stop(self, n):
        if STOP == n:
            self.a.i('s_waitcnt vmcnt(0)')
            self.a.i('s_endpgm')

    def srd(self, d, nbytes):
        self.a.i('s_mov_b32 s%d, 0x%x' % (d + 2, nbytes))
        self.a.i('s_mov_b32 s%d, 0x20000' % (d + 3))

    def st(self, stores):
        self.a.alt('s_cmp_lg_u32 s%d, 0' % sMode, 's_cbranch_scc1', stores, [x + ' sc1' if x.startswith('buffer_store') else x for x in stores])

    def l1only(self, L):
        self.a.alt('s_cmp_eq_u32 s%d, 0' % sLay, 's_cbranch_scc1', [], L)

    def flag(self, sF, inc=True):
        a = self.a
        a.i('s_add_u32 s%d, s%d, 1' % (sPH, sPH))
        a.i('v_mov_b32 v%d, s%d' % (vT, sPH))
        a.i('s_mov_b64 exec, 1')
        self.stamp('epi')
        a.i('s_waitcnt vmcnt(0)')
        self.st(['buffer_store_dword v%d, off, %s, s%d' % (vT, WS, sF)])
        a.i('s_mov_b64 exec, -1')
        self.stamp('drain')

    def tick(self):
        self.a.i('s_sub_u32 s%d, s%d, 1' % (sTO, sTO))
        self.a.rawbr('s_cbranch_scc1 L_end')

    def poll(self, vaddr):
        a = self.a
        lp = a.newlabel('POLL')
        a.label(lp)
        a.i('buffer_load_dword v%d, v%d, %s, 0 offen sc1' % (vT + 1, vaddr, WS))
        self.tick()
        a.i('s_waitcnt vmcnt(0)')
        a.i('v_cmp_gt_u32 vcc, s%d, v%d' % (sPH, vT + 1))
        a.i('s_cmp_eq_u64 vcc, 0')
        a.rawbr('s_cbranch_scc0 %s' % lp)
        a.forget()
        self.stamp('poll')

    def minchain(self, t, regs):
        a = self.a
        regs = list(regs)
        a.i('v_min3_u32 v%d, v%d, v%d, v%d' % (t, regs[0], regs[1], regs[2]))
        k = 3
        while k + 1 < len(regs):
            a.i('v_min3_u32 v%d, v%d, v%d, v%d' % (t, t, regs[k], regs[k + 1]))
            k += 2
        if k < len(regs):
            a.i('v_min_u32 v%d, v%d, v%d' % (t, t, regs[k]))

    def tagged_gather(self, loads, regs, name):
        a = self.a
        lp = a.newlabel('TG')
        a.label(lp)
        a.forget()
        for x in loads:
            a.i(x)
        self.tick()
        self.minchain(vT + 1, regs)
        a.i('v_cmp_eq_u32 vcc, 0, v%d' % (vT + 1))
        a.i('s_cmp_eq_u64 vcc, 0')
        a.rawbr('s_cbranch_scc0 %s' % lp)
        a.forget()
        self.stamp(name)

    def frag_loads(self, dst, kind, sbase, n, st, vaddr=vL16):
        L = []
        for j in range(n):
            g = []
            if j % 4 == 0 and j:
                g.append('s_add_u32 s%d, s%d, %d' % (st, sbase, 1024 * j))
            g.append('buffer_load_dwordx4 %s, v%d, %s, s%d offen offset:%d sc1' % (
                v4(dst(j), kind), vaddr, WS, st if j >= 4 else sbase, 1024 * (j % 4)))
            L.append(g)
        return L

    def emit(self, L):
        for g in L:
            if isinstance(g, str):
                self.a.i(g)
            else:
                for x in g:
                    self.a.i(x)

    def pack(self, dst, src, n):
        for p in range(n):
            self.a.i('v_cvt_pk_bf16_f32 v%d, v%d, v%d' % (dst + p, src + 2 * p, src + 2 * p + 1))

    def stats_part(self, X, t):
        a = self.a
        a.i('v_pk_add_f32 %s, %s, %s' % (v2(t), v2(X), v2(X + 2)))
        a.i('v_pk_mul_f32 %s, %s, %s' % (v2(t + 2), v2(X), v2(X)))
        a.i('v_pk_fma_f32 %s, %s, %s, %s' % (v2(t + 2), v2(X + 2), v2(X + 2), v2(t + 2)))
        for p in range(2, 8):
            a.i('v_pk_add_f32 %s, %s, %s' % (v2(t), v2(t), v2(X + 2 * p)))
            a.i('v_pk_fma_f32 %s, %s, %s, %s' % (v2(t + 2), v2(X + 2 * p), v2(X + 2 * p), v2(t + 2)))
        a.i('v_add_f32 v%d, v%d, v%d' % (t, t, t + 1))
        a.i('v_add_f32 v%d, v%d, v%d' % (t + 2, t + 2, t + 3))
        a.i('v_permlane32_swap_b32 v%d, v%d' % (t, t + 2))
        a.i('v_add_f32 v%d, v%d, v%d' % (t, t, t + 2))

    def stat_loads(self, G, soff):
        return ['buffer_load_dwordx4 %s, v%d, %s, s%d offen offset:%d sc1' % (v4(G + 4 * q), vL16, WS, soff, 1024 * q)
                for q in range(4)]

    def stats_fin(self, G, pk=True):
        L = []
        if pk:
            for w in (8, 4, 2):
                for p in range(0, w, 2):
                    L.append('v_pk_add_f32 %s, %s, %s' % (v2(G + p), v2(G + p), v2(G + p + w)))
        else:
            for w in (8, 4, 2):
                for p in range(w):
                    L.append('v_add_f32 v%d, v%d, v%d' % (G + p, G + p, G + p + w))
        L += ['v_add_f32 v%d, v%d, v%d' % (G, G, G + 1),
              'v_mov_b32 v%d, v%d' % (G + 1, G),
              'v_permlane32_swap_b32 v%d, v%d' % (G, G + 1),
              'v_mul_f32 v%d, %s, v%d' % (G, f32(-1.0 / 512), G),
              'v_mul_f32 v%d, %s, v%d' % (G + 1, f32(1.0 / 512), G + 1),
              'v_fma_f32 v%d, -v%d, v%d, v%d' % (G + 1, G, G, G + 1),
              'v_max_f32 v%d, 0, v%d' % (G + 1, G + 1)]
        return L

    def mu_frag(self, G):
        return ['v_cvt_pk_bf16_f32 v%d, v%d, v%d' % (G + 2, G, G),
                'v_and_b32 v%d, 0xffff0000, v%d' % (G + 2, G + 2),
                'v_sub_f32 v%d, v%d, v%d' % (G + 3, G, G + 2),
                'v_cvt_pk_bf16_f32 v%d, v%d, v%d' % (vMU, G + 2, G + 3),
                'v_mov_b32 v%d, v%d' % (vMU + 1, vMU)]

    def gelu_consts(self, q):
        return ['v_rsq_f32 v%d, v%d' % (q + 1, q),
                'v_mul_f32 v%d, v%d, v%d' % (vIR, q, q + 1),
                'v_mul_f32 v%d, %s, v%d' % (vK + 1, f32(GC0), q + 1),
                'v_mul_f32 v%d, v%d, v%d' % (vK, q + 1, q + 1),
                'v_mul_f32 v%d, %s, v%d' % (q + 1, f32(GC1), q + 1),
                'v_mul_f32 v%d, v%d, v%d' % (vK, vK, q + 1),
                'v_mov_b32 v%d, v%d' % (vIR + 1, vIR)]

    def gelu_plain(self, z0, n, tmp):
        L = []
        for g in range(0, n, 4):
            seqs = []
            for e in range(4):
                z, t = z0 + g + e, tmp + e
                seqs.append(['v_mul_f32 v%d, v%d, v%d' % (t, z, z),
                             'v_fma_f32 v%d, v%d, v%d, v%d' % (t, t, vK, vK + 1),
                             'v_mul_f32 v%d, v%d, v%d' % (t, t, z),
                             'v_exp_f32 v%d, v%d' % (t, t),
                             'v_fma_f32 v%d, v%d, v%d, v%d' % (t, t, vIR, vIR),
                             'v_rcp_f32 v%d, v%d' % (t, t),
                             'v_mul_f32 v%d, v%d, v%d' % (z, z, t)])
            for k in range(7):
                for e in range(4):
                    L.append(seqs[e][k])
        return L

    def gelu_pk(self, z0, n, tmp):
        L = []
        for g in range(0, n, 8):
            P = [(z0 + g + 2 * e, tmp + 2 * e) for e in range(4)]
            L += ['v_pk_mul_f32 %s, %s, %s' % (v2(t), v2(z), v2(z)) for z, t in P]
            L += ['v_pk_fma_f32 %s, %s, %s, %s op_sel:[0,0,1] op_sel_hi:[1,0,1]' % (v2(t), v2(t), v2(vK), v2(vK)) for z, t in P]
            L += ['v_pk_mul_f32 %s, %s, %s' % (v2(t), v2(t), v2(z)) for z, t in P]
            L += ['v_exp_f32 v%d, v%d' % (tmp + e, tmp + e) for e in range(8)]
            L += ['v_pk_fma_f32 %s, %s, %s, %s' % (v2(t), v2(t), v2(vIR), v2(vIR)) for z, t in P]
            L += ['v_rcp_f32 v%d, v%d' % (tmp + e, tmp + e) for e in range(8)]
            L += ['v_pk_mul_f32 %s, %s, %s' % (v2(z), v2(z), v2(t)) for z, t in P]
        return L

    def cost(self, x):
        return 8 if x.startswith(TRANS) else 4

    def put(self, x):
        if isinstance(x, tuple):
            if x[0] == 'ST':
                self.st(x[1])
                return 16
            self.l1only(x[1])
            return 8
        if isinstance(x, list):
            self.emit(x)
            return 4 * len(x) + 4
        self.a.i(x)
        return self.cost(x)

    def rs_send(self, j):
        b = vACC + 16 * j
        L = ['v_xor_b32 v%d, %d, v%d' % (vT + j, 2048 * j, vRB)]
        for q in range(2):
            L += ['v_cvt_pk_bf16_f32 v%d, v%d, v%d' % (b + p, b + 2 * p, b + 2 * p + 1) for p in range(4 * q, 4 * q + 4)]
        for q in range(2):
            L.append('ds_write_b128 v%d, %s offset:%d' % (vT + j, v4(b + 4 * q), 8192 * (j - 1) + 1024 * q))
        return L

    def paced(self, L, bg, every=12):
        for n, x in enumerate(L):
            self.put(x)
            if bg and n % every == every - 1:
                self.put(bg.pop(0))

    def ksplit(self, nk, wreg, acc0, LB1, LB0, breg, fill1=(), mid=None, first0=None, bg=None, bgfree=None, LAG=3):
        a = self.a
        loads = list(LB1) + list(LB0)
        bg = bg if bg is not None else []
        nbg = [0]
        for _ in range(AHEAD_LD):
            self.emit(loads.pop(0))

        def mf(w, b, ks):
            acc = vACC + 16 * (2 * w + b) if (w or b) else acc0
            a.i('v_mfma_f32_32x32x16_bf16 %s, %s, %s, %s' % (
                v16(acc), wreg(ks, w), v4(breg(b, ks)), v16(acc) if (ks or not (w or b)) else '0'))

        def gap(filler, ld, done):
            bud = 24
            if ld:
                if loads:
                    self.emit(loads.pop(0))
                    bud -= 8
                elif bg and (bgfree is None or bgfree(nbg[0]) <= done):
                    bud -= self.put(bg.pop(0))
                    nbg[0] += 1
            while filler and bud > 0:
                bud -= self.put(filler.pop(0))

        filler = list(fill1)
        for ks in range(nk):
            mf(1, 1, ks)
            gap(filler, True, 0)
            mf(0, 1, ks)
            gap(filler, False, 0)
        while filler:
            self.put(filler.pop(0))
        if mid:
            mid()
        if first0:
            a.i(first0)
        filler = []
        for ks in range(nk + LAG):
            if ks == 2:
                filler = self.rs_send(3) + self.rs_send(1)
            if ks == nk + 1:
                filler += self.rs_send(2)
            if ks < nk:
                mf(1, 0, ks)
                gap(filler, True, max(0, ks - LAG))
            if ks >= LAG:
                mf(0, 0, ks - LAG)
                gap(filler, ks >= nk, ks - LAG + 1)
        self.paced(filler, bg, 5)
        self.stamp('mfma')
        a.i('s_waitcnt lgkmcnt(0)')
        a.i('s_barrier')
        for j in (1, 3, 2):
            for q in range(2):
                a.i('ds_read_b128 %s, v%d offset:%d' % (v4(vACC + 16 * j + 4 * q), vRB, 8192 * (j - 1) + 1024 * q))
        if bg:
            self.put(bg.pop(0))
        L = []
        for j in (1, 3, 2):
            for p in range(8):
                L.append('v_dot2c_f32_bf16 v%d, s%d, v%d' % (acc0 + 2 * p, sSelLo, vACC + 16 * j + p))
                L.append('v_dot2c_f32_bf16 v%d, s%d, v%d' % (acc0 + 2 * p + 1, sSelHi, vACC + 16 * j + p))
        self.paced(L, bg)
        self.stamp('rs')

    def small_w_loads(self, delta):
        L = []
        pre = ['s_add_u32 s%d, s%d, 0x%x' % (sT + 10, sW1a, delta), 's_add_u32 s%d, s%d, 0x%x' % (sT + 11, sW1b, delta)]
        L0 = self.frag_loads(lambda j: vWS + 8 * j, 'v', sT + 10, 8, sT + 12)
        L1 = self.frag_loads(lambda j: vWS + 8 * j + 4, 'v', sT + 11, 8, sT + 13)
        for j in range(8):
            L.append((pre if j == 0 else []) + L0[j])
            L.append(L1[j])
        return L

    def w4_loads(self):
        L0 = self.frag_loads(lambda j: 8 * j, 'a', sW4a, 28, sT + 15)
        L1 = self.frag_loads(lambda j: 8 * j + 4, 'a', sW4b, 28, sT + 16)
        L = []
        for j in range(28):
            L.append(L0[j])
            L.append(L1[j])
        return L

    def prologue(self):
        a = self.a
        sG, sR, sX = sP, sP + 1, sP + 2
        p0, p1, p2, p3, p4, p5 = range(sP + 3, sP + 9)
        vTid = 15
        a.i('s_cmp_ge_u32 s2, 256')
        a.i('s_cbranch_scc1 L_end')
        if STAMP:
            a.i('s_mov_b32 s98, 0\nv_mov_b32 v31, 0')
        self.stamp('r', True)
        self.stamp('t0')
        a.i('s_load_dwordx8 s[%d:%d], s[0:1], %d' % (sKW, sKW + 7, KA['w1']))
        for r, k in ((rWS, 'ws'), (rK, 'k'), (rV, 'v'), (rSK, 'sk'), (rSSM, 'ssm_k'), (rQ, 'q'),
                     (rOUT, 'out'), (rW2, 'w2'), (sDp, 'ssm_D')):
            a.i('s_load_dwordx2 s[%d:%d], s[0:1], %d' % (r, r + 1, KA[k]))
        a.i('s_getreg_b32 s%d, hwreg(HW_REG_XCC_ID, 0, 4)' % sX)
        a.i('s_and_b32 s%d, s2, 7\ns_lshr_b32 s%d, s2, 3' % (sG, sR))
        a.i('s_lshl_b32 s%d, s%d, 21' % (sGB, sG))
        a.i('v_mov_b32 v%d, v0' % vTid)
        a.i('v_lshrrev_b32 v16, 6, v0')
        a.i('v_and_b32 v0, 63, v0')
        a.i('v_readfirstlane_b32 s%d, v16' % sW)
        a.i('v_lshlrev_b32 v%d, 4, v0' % vL16)
        for r, n in ((rWS, WS_BYTES), (rK, S * D * 2), (rV, S * D * 2), (rSK, D * 8), (rSSM, D * S * 2),
                     (rQ, S * D * 2), (rOUT, S * D * 2), (rW2, D * D * 2)):
            self.srd(r, n)
        uPitch, uSrc, uDst, uTS, uCS, sCl = sA3, sST3, sH2o, sH2o3, sBx0, sW1a
        a.i('s_lshl_b32 s%d, s2, 2\ns_add_u32 s%d, s%d, s%d' % (p0, p0, p0, sW))
        a.i('s_mov_b32 s%d, 0x20000' % (rWSRC + 3))
        a.i('s_mov_b32 s%d, 0x%x\ns_mov_b32 s%d, 0' % (rWSRC + 2, D * F * 2, sCl))
        a.i('s_lshr_b32 s%d, s%d, 4\ns_and_b32 s%d, s%d, 15' % (p1, p0, p3, p0))
        a.i('s_mov_b32 s%d, %d\ns_mov_b32 s%d, 0x%x\ns_mov_b32 s%d, 32768\ns_mov_b32 s%d, 0x%x' % (
            uPitch, F * 2, uDst, WF3, uTS, uCS, CSP))
        a.i('s_cmp_lt_u32 s%d, 448' % p0)
        a.rawbr('s_cbranch_scc1 L_ugo')
        a.i('s_sub_u32 s%d, s%d, 448\ns_and_b32 s%d, s%d, 7\ns_lshr_b32 s%d, s%d, 3' % (p3, p0, p1, p3, p3, p3))
        a.i('s_mov_b32 s%d, 1024\ns_mov_b32 s%d, 0x%x\ns_mov_b32 s%d, %d\ns_mov_b32 s%d, 0x%x\ns_mov_b32 s%d, 1' % (
            uPitch, uDst, WF4, uTS, 112 * 1024, uCS, OOB, sCl))
        a.i('s_cmp_lt_u32 s%d, 896' % p0)
        a.rawbr('s_cbranch_scc1 L_ugo')
        a.i('s_mov_b32 s%d, 0x%x\ns_mov_b32 s%d, 2' % (rWSRC + 2, D * D * 2, sCl))
        a.i('s_sub_u32 s%d, s%d, 56' % (p3, p3))
        a.i('s_mov_b32 s%d, 0x%x\ns_mov_b32 s%d, 32768\ns_mov_b32 s%d, 0x%x' % (uDst, WF1, uTS, uCS, CSP + F * 64))
        a.label('L_ugo', drain=False)
        a.i('s_mul_i32 s%d, s%d, s%d\ns_lshl_b32 s%d, s%d, 5\ns_lshl_b32 s%d, s%d, 7\ns_add_u32 s%d, s%d, s%d' % (
            uSrc, p3, uPitch, uSrc, uSrc, p4, p1, uSrc, uSrc, p4))
        a.i('s_mul_i32 s%d, s%d, s%d\ns_lshl_b32 s%d, s%d, 1\ns_add_u32 s%d, s%d, s%d' % (p4, p1, uTS, p4, p4, uDst, uDst, p4))
        a.i('s_lshl_b32 s%d, s%d, 11\ns_add_u32 s%d, s%d, s%d' % (p4, p3, uDst, uDst, p4))
        a.i('s_lshl_b32 s%d, s%d, 12\ns_add_u32 s%d, s%d, s%d\ns_lshl_b32 s%d, s%d, 2\ns_add_u32 s%d, s%d, s%d' % (
            p4, p1, uCS, uCS, p4, p4, p3, uCS, uCS, p4))
        a.i('v_bfe_u32 v77, v0, 2, 3')
        a.i('v_lshrrev_b32 v78, 5, v0\nv_lshlrev_b32 v78, 6, v78')
        a.i('v_and_b32 v79, 3, v0')
        a.i('v_lshl_add_u32 v78, v79, 4, v78')
        a.i('v_lshl_add_u32 v79, v77, 10, v78')
        a.i('v_mul_lo_u32 v77, v77, s%d' % uPitch)
        a.i('v_add_u32 v77, v77, v78')
        a.i('s_lshl_b32 s%d, s%d, 13' % (p0, sW))
        a.i('s_lshl_b32 s%d, s%d, 3' % (uPitch, uPitch))
        vT16 = 64
        a.i('v_lshlrev_b32 v%d, 4, v%d' % (vT16, vTid))
        a.i('v_and_b32 v65, 31, v%d' % vTid)
        a.i('v_lshrrev_b32 v66, 5, v%d' % vTid)
        a.i('s_lshl_b32 s%d, s%d, 3' % (p5, sR))
        a.i('v_add_u32 v66, s%d, v66' % p5)
        a.i('s_lshl_b32 s%d, s%d, 5' % (p5, sG))
        a.i('v_add_u32 v67, s%d, v65' % p5)
        a.i('v_lshlrev_b32 v72, 13, v66')
        a.i('v_lshl_add_u32 v72, v67, 2, v72')
        a.i('v_add_u32 v73, 4096, v72')
        a.i('v_subrev_u32 v74, 3072, v72')
        a.i('v_lshlrev_b32 v75, 4, v67')
        a.i('v_subrev_u32 v76, 4, v%d' % vT16)
        sKVo, sYo = sH2x0, sH2x1
        a.i('s_lshl_b32 s%d, s%d, 13\ns_add_u32 s%d, s%d, s%d\ns_add_u32 s%d, s%d, 0x%x' % (
            p1, sR, sKVo, p1, sGB, sKVo, sKVo, O_KVT))
        a.i('s_lshl_b32 s%d, s%d, 18\ns_add_u32 s%d, s%d, s%d' % (p2, sG, p2, p2, p1))
        a.i('s_add_u32 s%d, s%d, 0x%x' % (sYo, p2, YB))
        a.i('s_lshr_b32 s%d, s%d, 11\ns_mov_b32 s%d, 0x%x' % (p3, p2, p4, EPO))
        a.i('s_waitcnt lgkmcnt(0)')
        self.stamp('karg')
        sDv = sBx1
        a.i('s_load_dword s%d, s[%d:%d], s%d' % (sTag, rWS, rWS + 1, p4))
        a.i('s_load_dword s%d, s[%d:%d], s%d' % (sDv, sDp, sDp + 1, p3))
        a.i('s_cmp_eq_u32 s%d, 0\ns_cselect_b64 s[%d:%d], s[%d:%d], s[%d:%d]' % (sCl, rWSRC, rWSRC + 1, sKW + 4, sKW + 5, sKW + 6, sKW + 7))
        a.i('s_cmp_eq_u32 s%d, 2\ns_cselect_b64 s[%d:%d], s[%d:%d], s[%d:%d]' % (sCl, rWSRC, rWSRC + 1, sKW, sKW + 1, rWSRC, rWSRC + 1))
        for p in range(4):
            a.i('s_add_u32 m0, s%d, %d' % (p0, 1024 * p))
            if p:
                a.i('s_add_u32 s%d, s%d, s%d' % (uSrc, uSrc, uPitch))
            else:
                a.i('s_nop 0')
            a.i('buffer_load_dwordx4 v77, s[%d:%d], s%d offen lds' % (rWSRC, rWSRC + 3, uSrc))
        sU2, uDst2 = sHaloP, sOwnXA
        a.i('s_and_b32 s%d, s2, 1\ns_lshl_b32 s%d, s%d, 2\ns_or_b32 s%d, s%d, s%d' % (sU2, sU2, sU2, sU2, sU2, sW))
        L = ('s_lshr_b32 s%d, s2, 1\ns_and_b32 s%d, s%d, 7\ns_lshr_b32 s%d, s%d, 3' % (p3, p1, p3, p3, p3) + '\n' +
             's_lshl_b32 s%d, s%d, 15\ns_lshl_b32 s%d, s%d, 7\ns_add_u32 s%d, s%d, s%d' % (p4, p3, p5, p1, p4, p4, p5) + '\n' +
             's_lshl_b32 s%d, s%d, 16\ns_lshl_b32 s%d, s%d, 11\ns_add_u32 s%d, s%d, s%d\ns_add_u32 s%d, s%d, 0x%x' % (
                 uDst2, p1, p5, p3, uDst2, uDst2, p5, uDst2, uDst2, WF2)).split('\n')
        for p in range(4):
            L.append('s_add_u32 m0, s%d, %d' % (p0, 4096 + 1024 * p))
            L.append('s_add_u32 s%d, s%d, %d' % (p5, p4, 8192 * p))
            L.append('buffer_load_dwordx4 v79, s[%d:%d], s%d offen lds' % (rW2, rW2 + 3, p5))
        a.alt('s_cmp_eq_u32 s%d, 5' % sU2, 's_cbranch_scc1', [], L)
        ndma = len(a.vm)
        KR, VR, SKR = 80, 92, 100
        for e in range(3):
            a.i('buffer_load_dword v%d, v74, s[%d:%d], 0 offen offset:%d' % (KR + e, rK, rK + 3, e * 1024))
        for e in range(8):
            a.i('buffer_load_dword v%d, v%d, s[%d:%d], 0 offen offset:%d' % (KR + 3 + e, 72 + e // 4, rK, rK + 3, (e % 4) * 1024))
        a.i('buffer_load_dwordx4 %s, v75, s[%d:%d], 0 offen' % (v4(SKR), rSK, rSK + 3))
        for e in range(8):
            a.i('buffer_load_dword v%d, v%d, s[%d:%d], 0 offen offset:%d' % (VR + e, 72 + e // 4, rV, rV + 3, (e % 4) * 1024))
        SS = 104
        a.i('s_add_u32 s%d, s%d, 4096' % (p3, p2))
        a.i('buffer_load_dwordx4 %s, v%d, s[%d:%d], s%d offen' % (v4(SS), vT16, rSSM, rSSM + 3, p2))
        a.i('buffer_load_dword v%d, v76, s[%d:%d], s%d offen' % (SS + 8, rSSM, rSSM + 3, p2))
        a.i('buffer_load_dwordx4 %s, v%d, s[%d:%d], s%d offen' % (v4(SS + 4), vT16, rSSM, rSSM + 3, p3))
        a.i('buffer_load_dword v%d, v76, s[%d:%d], s%d offen' % (SS + 9, rSSM, rSSM + 3, p3))
        vKF = 25
        a.i('v_and_b32 v68, 15, v0\nv_lshlrev_b32 v68, 7, v68')
        a.i('s_lshl_b32 s%d, s%d, 11\ns_add_u32 s%d, s%d, s%d' % (p3, sW, p3, p3, sKVo))
        a.i('buffer_load_dword v69, v68, %s, s%d offen sc1' % (WS, p3))
        a.i('s_lshl_b32 s%d, s%d, 7\ns_add_u32 s%d, s%d, s%d\ns_add_u32 s%d, s%d, 0x%x' % (p3, sW, p3, p3, sGB, p3, p3, O_KF))
        a.i('v_and_b32 v%d, 31, v0\nv_lshlrev_b32 v%d, 2, v%d' % (vKF, vKF, vKF))
        a.i('buffer_load_dword v70, v%d, %s, s%d offen sc1' % (vKF, WS, p3))
        sKFl = sSTld
        a.i('s_mov_b32 s%d, s%d' % (sKFl, p3))
        a.i('v_mov_b32 v120, 0\nv_mov_b32 v121, 0\nv_mov_b32 v122, 0\nv_mov_b32 v123, 0')
        a.i('s_lshl_b32 s%d, s%d, 12\ns_add_u32 s%d, s%d, s%d\ns_add_u32 s%d, s%d, 0x%x' % (p3, sR, p3, p3, sGB, p3, p3, O_Z))
        a.i('s_add_u32 s%d, s%d, 4096' % (p4, sYo))
        for so in (p3, sYo, p4):
            a.i('buffer_store_dwordx4 v[120:123], v%d, %s, s%d offen sc1' % (vT16, WS, so))
        a.i('s_mov_b32 s%d, 0\ns_mov_b32 s%d, 400000\ns_mov_b32 s%d, 0' % (sPH, sTO, sLay))
        a.i('s_mov_b32 s%d, 0x3f80\ns_mov_b32 s%d, 0x3f800000' % (sSelLo, sSelHi))
        a.i('s_lshl_b32 s%d, s%d, 2\ns_add_u32 s%d, s%d, s%d\ns_add_u32 s%d, s%d, 0x%x' % (p3, sR, p3, p3, sGB, p3, p3, O_XC))
        a.i('s_waitcnt lgkmcnt(0)')
        self.stamp('issue')
        a.i('s_and_b32 s%d, s%d, -16\ns_add_u32 s%d, s%d, 0x%x\ns_or_b32 s%d, s%d, s%d' % (sTag, sTag, sTag, sTag, TAGC, sX, sX, sTag))
        a.i('v_mov_b32 v71, s%d' % sX)
        a.alt('s_cmp_eq_u32 s%d, 0' % sW, 's_cbranch_scc1', [], [
            's_mov_b64 exec, 1',
            'buffer_store_dword v71, off, %s, s%d sc1' % (WS, p3),
            's_mov_b64 exec, -1'])
        CA, CB, CD = 16, 17, 26
        vI, vQ = 114, 115
        a.i('v_and_b32 v%d, 15, v0\nv_lshrrev_b32 v%d, 4, v0' % (vI, vQ))
        sCh, sHalf = p1, p3
        a.i('s_and_b32 s%d, s%d, 1\ns_lshr_b32 s%d, s%d, 1' % (sCh, sW, sHalf, sW))
        a.i('s_mul_i32 s%d, s%d, %d\ns_lshl_b32 s%d, s%d, 8\ns_add_u32 s%d, s%d, s%d\ns_add_u32 s%d, s%d, %d' % (
            p4, sCh, CV_KVS, p5, sHalf, p4, p4, p5, p4, p4, L_RS + CV_KVR + 480))
        a.i('v_lshlrev_b32 v116, 5, v%d' % vI)
        a.i('v_sub_u32 v%d, s%d, v116' % (CA, p4))
        a.i('v_lshl_add_u32 v%d, v%d, 4, v%d' % (CA, vQ, CA))
        a.i('s_mul_i32 s%d, s%d, %d\ns_add_u32 s%d, s%d, s%d\ns_add_u32 s%d, s%d, %d' % (
            p4, sCh, CV_CHS, p4, p4, p5, p4, p4, L_RS + CV_E + CV_OOFF))
        a.i('v_add_u32 v116, 2, v%d\nv_lshrrev_b32 v116, 1, v116\nv_lshlrev_b32 v116, 2, v116' % vI)
        a.i('v_lshl_add_u32 v116, v%d, 4, v116' % vQ)
        a.i('v_add_u32 v116, s%d, v116' % p4)
        a.i('v_and_b32 v117, 1, v%d' % vI)
        a.i('v_mul_u32_u24 v117, %d, v117' % CV_OOFF)
        a.i('v_sub_u32 v%d, v116, v117' % CB)
        for b in range(1, 8):
            a.i('v_add_u32 v%d, %d, v%d' % (CB + b, 512 * b, CB))
        a.i('s_lshl_b32 s%d, s%d, 4' % (p4, sCh))
        a.i('s_lshr_b32 s%d, s%d, s%d\ns_and_b32 s%d, s%d, 0xffff' % (sDv, sDv, p4, sDv, sDv))
        a.i('s_cmp_eq_u32 s%d, 0\ns_cselect_b32 s%d, s%d, 0' % (sHalf, sDv, sDv))
        a.i('v_lshl_add_u32 v116, v%d, 3, v%d' % (vQ, vI))
        a.i('v_sub_u32 v116, 15, v116')
        a.i('v_and_b32 v117, 1, v116\nv_lshlrev_b32 v117, 4, v117')
        a.i('v_lshlrev_b32 v117, v117, s%d' % sDv)
        a.i('v_ashrrev_i32 v116, 1, v116')
        for p in range(4):
            a.i('v_cmp_eq_u32 vcc, %d, v116' % p)
            a.i('v_cndmask_b32 v%d, 0, v117, vcc' % (CD + p))
        vLW = 118
        a.i('v_add_u32 v%d, %d, v%d' % (vLW, L_RS, vT16))
        a.i('v_cmp_gt_u32 vcc, 32, v%d' % vTid)
        a.i('s_and_saveexec_b64 s[%d:%d], vcc' % (sHM, sHM + 1))
        a.i('ds_write_b128 v%d, v[120:123] offset:%d' % (vLW, CV_KVR + 4096))
        a.i('ds_write_b128 v%d, v[120:123] offset:%d' % (vLW, CV_KVR + CV_KVS + 4096))
        a.i('s_mov_b64 exec, -1')
        a.i('v_cmp_gt_u32 vcc, 2, v%d' % vTid)
        a.i('s_and_saveexec_b64 s[%d:%d], vcc' % (sHM, sHM + 1))
        for c in range(2):
            a.i('ds_write_b128 v%d, v[120:123] offset:%d' % (vLW, CV_E + c * CV_CHS))
            a.i('ds_write_b128 v%d, v[120:123] offset:%d' % (vLW, CV_E + c * CV_CHS + CV_OOFF))
        a.i('s_mov_b64 exec, -1')
        a.i('v_sub_u32 v66, 255, v66\nv_lshlrev_b32 v66, 4, v66')
        a.i('v_lshl_add_u32 v66, v65, 13, v66')
        vTR = 119
        a.i('v_lshrrev_b32 v116, 5, v0\nv_lshlrev_b32 v116, 8, v116')
        a.i('v_bfe_u32 v117, v0, 2, 2\nv_lshl_add_u32 v116, v117, 6, v116')
        a.i('v_bfe_u32 v117, v0, 4, 1\nv_lshl_add_u32 v116, v117, 5, v116')
        a.i('v_and_b32 v117, 3, v0\nv_lshl_add_u32 v116, v117, 3, v116')
        a.i('v_add_u32 v%d, s%d, v116' % (vTR, p0))
        sKFo, sRFo, sXCl = sW4a, sW4b, sW1b
        a.i('s_lshr_b32 s%d, s%d, 3\ns_sub_u32 s%d, 3, s%d\ns_lshl_b32 s%d, s%d, 7' % (p4, sR, p4, p4, p4, p4))
        a.i('s_and_b32 s%d, s%d, 7\ns_lshl_b32 s%d, s%d, 4\ns_add_u32 s%d, s%d, s%d' % (p5, sR, p5, p5, p4, p4, p5))
        a.i('s_lshl_b32 s%d, s%d, 2\ns_add_u32 s%d, s%d, s%d\ns_add_u32 s%d, s%d, s%d\ns_add_u32 s%d, s%d, 0x%x' % (
            p5, sW, p4, p4, p5, sKFo, p4, sGB, sKFo, sKFo, O_KF))
        a.i('s_lshl_b32 s%d, s2, 7\ns_add_u32 s%d, s%d, s%d\ns_add_u32 s%d, s%d, 0x%x' % (sRFo, sRFo, sRFo, p5, sRFo, sRFo, RF))
        a.i('s_add_u32 s%d, s%d, 0x%x' % (sXCl, sGB, O_XC))
        vRF = 30
        a.i('s_bfe_u32 s%d, s%d, 0x30001\ns_mul_i32 s%d, s%d, 7\ns_and_b32 s%d, s%d, 1\ns_lshl_b32 s%d, s%d, 2\ns_add_u32 s%d, s%d, s%d' % (
            p4, sR, p4, p4, p5, sR, p5, p5, p4, p4, p5))
        a.i('s_lshr_b32 s%d, s%d, 1\ns_lshl_b32 s%d, s%d, 2' % (p4, p4, p4, p4))
        a.i('v_add_u32 v116, s%d, v%d' % (p4, vI))
        a.i('s_bfe_u32 s%d, s%d, 0x10002\ns_add_u32 s%d, s%d, 224' % (p4, sR, p4, p4))
        a.i('v_lshl_add_u32 v117, v%d, 1, s%d' % (vI, p4))
        a.i('v_cmp_gt_u32 vcc, 16, v0')
        a.i('v_cndmask_b32 v116, v117, v116, vcc')
        a.i('s_lshl_b32 s%d, s%d, 7\ns_and_b32 s%d, s%d, 7\ns_add_u32 s%d, s%d, s%d' % (p4, sHalf, p5, sR, p4, p4, p5))
        a.i('v_lshl_add_u32 v117, v%d, 3, s%d' % (vI, p4))
        a.i('v_cmp_gt_u32 vcc, 32, v0')
        a.i('v_cndmask_b32 v116, v117, v116, vcc')
        a.i('v_lshlrev_b32 v%d, 7, v116' % vRF)
        a.i('v_mov_b32 v71, s%d' % sTag)
        self.stamp('setup')
        FR = 176

        def conv_unit(off, dst, ts_is_reg, ts):
            L = []
            for tau in range(2):
                for ksl in range(2):
                    for hf in range(2):
                        L.append('ds_read_b64_tr_b16 %s, v%d offset:%d' % (
                            v2(FR + 8 * tau + 4 * ksl + 2 * hf), vTR, off + (2 * ksl + hf) * 1024 + tau * 512))
            L.append('s_add_u32 s%d, s%d, %s' % (p4, dst, ('s%d' % ts) if ts_is_reg else str(ts)))
            for tau in range(2):
                for ksl in range(2):
                    L.append('buffer_store_dwordx4 %s, v%d, %s, s%d offen offset:%d sc1' % (
                        v4(FR + 8 * tau + 4 * ksl), vL16, WS, p4 if tau else dst, 1024 * ksl))
            return L
        a.i('v_mov_b32 v124, 0x3f803f80\nv_mov_b32 v125, v124\nv_mov_b32 v126, v124\nv_mov_b32 v127, v124')
        a.wait(vm=len(a.vm) - ndma)
        self.stamp('wdma')
        a.alt('s_cmp_eq_u32 s%d, 5' % sU2, 's_cbranch_scc1', [], conv_unit(4096, uDst2, False, 32768))
        self.emit(conv_unit(0, uDst, True, uTS))
        for tau in range(2):
            acc = 192 + 16 * tau
            a.i('v_mfma_f32_32x32x16_bf16 %s, v[124:127], %s, 0' % (v16(acc), v4(FR + 8 * tau)))
            a.i('v_mfma_f32_32x32x16_bf16 %s, v[124:127], %s, %s' % (v16(acc), v4(FR + 8 * tau + 4), v16(acc)))
        self.stamp('relay')
        TP, K0, K1, KV = 128, 136, 148, 160
        for c in range(2):
            for p in range(2):
                a.i('v_lshlrev_b32 v%d, 16, v%d' % (TP + 4 * c + 2 * p, SKR + 2 * c + p))
                a.i('v_and_b32 v%d, 0xffff0000, v%d' % (TP + 1 + 4 * c + 2 * p, SKR + 2 * c + p))
        for e in range(11):
            a.i('v_lshlrev_b32 v%d, 16, v%d' % (K0 + e, KR + e))
            a.i('v_and_b32 v%d, 0xffff0000, v%d' % (K1 + e, KR + e))
        a.i('v_lshlrev_b32 v116, 6, v0')
        a.i('v_cndmask_b32 v192, v208, v192, vcc')
        a.i('buffer_store_dword v192, v116, %s, s%d offen sc1' % (WS, uCS))
        for c in range(2):
            kb, tb = (K0, K1)[c], TP + 4 * c
            for e in range(8):
                a.i('v_mul_f32 v%d, v%d, v%d' % (KV + 8 * c + e, kb + 3 + e, tb))
            for i in range(1, 4):
                for e in range(8):
                    a.i('v_fmac_f32 v%d, v%d, v%d' % (KV + 8 * c + e, kb + 3 + e - i, tb + i))
        for e in range(8):
            a.i('v_lshlrev_b32 v116, 16, v%d' % (VR + e))
            a.i('v_and_b32 v117, 0xffff0000, v%d' % (VR + e))
            a.i('v_mul_f32 v%d, v%d, v116' % (KV + e, KV + e))
            a.i('v_mul_f32 v%d, v%d, v117' % (KV + 8 + e, KV + 8 + e))
        for c in range(2):
            for p in range(4):
                a.i('v_cvt_pk_bf16_f32 v%d, v%d, v%d' % (TP + 4 * c + p, KV + 8 * c + 7 - 2 * p, KV + 8 * c + 6 - 2 * p))
        self.stamp('kv')
        a.label('L_xcc')
        a.i('buffer_load_dword v116, v%d, %s, s%d offen sc1' % (vKF, WS, sXCl))
        self.tick()
        a.i('s_waitcnt vmcnt(0)')
        a.i('v_and_b32 v117, -16, v116')
        a.i('v_cmp_ne_u32 vcc, s%d, v117' % sTag)
        a.i('s_cmp_eq_u64 vcc, 0')
        a.rawbr('s_cbranch_scc0 L_xcc')
        a.forget()
        a.i('v_cmp_ne_u32 vcc, s%d, v116' % sX)
        a.i('s_add_u32 s%d, s%d, 0x%x\ns_add_u32 s%d, s%d, 4096' % (p4, sGB, O_KVT, p5, p4))
        a.i('s_cmp_lg_u64 vcc, 0')
        a.i('s_cselect_b32 s%d, 1, 0' % sMode)
        if FORCE_SLOW:
            a.i('s_mov_b32 s%d, 1' % sMode)
        self.stamp('xcc')
        self.st(['buffer_store_dwordx4 %s, v66, %s, s%d offen' % (v4(TP), WS, p4),
                 'buffer_store_dwordx4 %s, v66, %s, s%d offen' % (v4(TP + 4), WS, p5)])
        a.i('s_mov_b64 exec, 1')
        a.i('buffer_store_dword v71, off, %s, s%d sc1' % (WS, sRFo))
        a.i('s_mov_b64 exec, -1')
        for c in range(2):
            kb = SS + 4 * c
            o = 124 if c == 0 else 120
            a.i('ds_write_b128 v%d, %s offset:%d' % (vLW, v4(kb), CV_E + c * CV_CHS + 32))
            a.i('v_alignbit_b32 v%d, v%d, v%d, 16' % (o, kb, SS + 8 + c))
            for p in range(1, 4):
                a.i('v_alignbit_b32 v%d, v%d, v%d, 16' % (o + p, kb + p, kb + p - 1))
            a.i('ds_write_b128 v%d, %s offset:%d' % (vLW, v4(o), CV_E + c * CV_CHS + CV_OOFF + 32))
        a.i('s_mov_b64 exec, 1')
        a.i('s_waitcnt vmcnt(1)')
        self.st(['buffer_store_dword v71, off, %s, s%d' % (WS, sKFo)])
        a.i('s_mov_b64 exec, -1')
        self.stamp('kflag')
        a.label('L_kf')
        a.i('buffer_load_dword v116, v%d, %s, s%d offen sc1' % (vKF, WS, sKFl))
        self.tick()
        a.i('s_waitcnt vmcnt(0)')
        a.i('v_cmp_ne_u32 vcc, s%d, v116' % sTag)
        a.i('s_cmp_eq_u64 vcc, 0')
        a.rawbr('s_cbranch_scc0 L_kf')
        a.forget()
        self.stamp('kpoll')
        a.i('s_add_u32 s%d, s%d, 4096' % (p4, sKVo))
        a.i('buffer_load_dwordx4 %s, v%d, %s, s%d offen sc1' % (v4(TP), vT16, WS, sKVo))
        a.i('buffer_load_dwordx4 %s, v%d, %s, s%d offen sc1' % (v4(TP + 4), vT16, WS, p4))
        a.i('ds_write_b128 v%d, %s offset:%d' % (vLW, v4(TP), CV_KVR))
        a.i('ds_write_b128 v%d, %s offset:%d' % (vLW, v4(TP + 4), CV_KVR + CV_KVS))
        a.i('s_waitcnt lgkmcnt(0)')
        a.i('s_barrier')
        self.stamp('stage')
        self.stop(1)
        ACC = 64
        FA, FB = [0, 64], [32, 96]

        def loads(cc, buf):
            L = []
            for d in range(8):
                L.append('ds_read_b128 %s, v%d offset:%d' % (v4(FA[buf] + 4 * d, 'a'), CA, 512 * (7 - d) + 64 * cc))
                L.append('ds_read2_b32 %s, v%d offset0:%d offset1:%d' % (v2(FB[buf] + 4 * d, 'a'), CB + d, 16 * cc, 16 * cc + 1))
                L.append('ds_read2_b32 %s, v%d offset0:%d offset1:%d' % (v2(FB[buf] + 4 * d + 2, 'a'), CB + d, 16 * cc + 2, 16 * cc + 3))
            return L
        self.emit(loads(0, 0))
        a.i('v_lshlrev_b32 v116, 7, v%d' % vTid)
        a.i('s_lshl_b32 s%d, s%d, 16\ns_add_u32 s%d, s%d, s%d\ns_add_u32 s%d, s%d, 32768' % (p4, sR, p4, p4, sGB, p5, p4))
        a.i('buffer_load_dword v117, v116, %s, s%d offen sc1' % (WS, p4))
        a.i('buffer_load_dword v113, v116, %s, s%d offen sc1' % (WS, p5))
        sYo2 = sP + 9
        a.i('s_mov_b32 s%d, s%d' % (sYo2, sYo))
        setup = self.main_setup(sG, sR)
        vQT = 100
        stream = []
        for cc in range(4):
            buf = cc & 1
            nxt = loads(cc + 1, buf ^ 1) if cc < 3 else []
            mf = []
            if cc == 0:
                for m in range(8):
                    mf.append('v_mfma_f32_16x16x32_bf16 %s, %s, %s, 0' % (v4(ACC + 4 * m), v4(CD), v4(FA[buf] + 4 * m, 'a')))
            pairs = sorted([(m, b) for m in range(8) for b in range(m + 1)], key=lambda t: (max(t[0] - t[1], t[1]), t[1]))
            for m, b in pairs:
                mf.append('v_mfma_f32_16x16x32_bf16 %s, %s, %s, %s' % (
                    v4(ACC + 4 * m), v4(FB[buf] + 4 * b, 'a'), v4(FA[buf] + 4 * (m - b), 'a'), v4(ACC + 4 * m)))
            if cc == RFCC:
                while setup:
                    a.i(setup.pop(0))
                a.i('s_mov_b32 s%d, 0x%x' % (p4, RF))
                a.label('L_rf', drain=False)
                a.i('buffer_load_dwordx4 v[120:123], v%d, %s, s%d offen sc1' % (vRF, WS, p4))
                self.tick()
                a.i('s_waitcnt vmcnt(0)')
                a.i('v_xor_b32 v120, s%d, v120\nv_xor_b32 v121, s%d, v121\nv_xor_b32 v122, s%d, v122\nv_xor_b32 v123, s%d, v123' % ((sTag,) * 4))
                a.i('v_or3_b32 v120, v120, v121, v122\nv_or_b32 v120, v120, v123')
                a.i('v_cmp_ne_u32 vcc, 0, v120')
                a.i('s_cmp_eq_u64 vcc, 0')
                a.rawbr('s_cbranch_scc0 L_rf')
                self.stamp('rf')
                stream = self.early_stream(vQT)
            k = 0
            for n, x in enumerate(mf):
                a.i(x)
                if n >= 8 and k < len(nxt):
                    a.i(nxt[k])
                    k += 1
                elif setup:
                    for _ in range(3):
                        if setup:
                            a.i(setup.pop(0))
                if stream and n % 2 == 1:
                    self.emit([stream.pop(0)])
            while k < len(nxt):
                a.i(nxt[k])
                k += 1
        self.stamp('conv')
        a.i('s_barrier')
        a.i('s_lshl_b32 s%d, s%d, 13\ns_add_u32 s%d, s%d, %d' % (p4, sW, p4, p4, L_RS))
        a.i('v_add_u32 v116, s%d, v%d' % (p4, vL16))
        for m in range(8):
            a.i('ds_write_b128 v116, %s offset:%d' % (v4(ACC + 4 * m), 1024 * m))
        a.i('s_lshl_b32 s%d, s%d, 11\ns_add_u32 s%d, s%d, s%d\ns_add_u32 s%d, s%d, %d' % (p4, sW, sYo2, sYo2, p4, p4, p4, L_RS))
        a.i('v_add_u32 v116, s%d, v%d' % (p4, vL16))
        a.i('v_lshlrev_b32 v117, 6, v%d\nv_lshl_add_u32 v117, v%d, 4, v117' % (vI, vQ))
        a.i('s_waitcnt lgkmcnt(0)')
        a.i('s_barrier')
        for mm in range(2):
            for src in range(4):
                a.i('ds_read_b128 %s, v116 offset:%d' % (v4(64 + 16 * mm + 4 * src), src * 8192 + mm * 1024))
        for mm in range(2):
            b = 64 + 16 * mm
            for r in range(0, 8, 2):
                a.i('v_pk_add_f32 %s, %s, %s' % (v2(b + r), v2(b + r), v2(b + 8 + r)))
            for r in range(4):
                a.i('v_cvt_pk_bf16_f32 v%d, v%d, v%d' % (b + r, b + r, b + 4 + r))
            for r in range(4):
                a.i('v_max_u32 v%d, 1, v%d' % (b + r, b + r))
            a.i('buffer_store_dwordx4 %s, v117, %s, s%d offen offset:%d sc1' % (v4(b), WS, sYo2, 1024 * mm))
        self.emit(stream)
        self.stamp('ystore')
        for t2 in range(2):
            b = vQT + 4 * t2
            a.i('v_permlane32_swap_b32 v%d, v%d' % (b, b + 2))
            a.i('v_permlane32_swap_b32 v%d, v%d' % (b + 1, b + 3))
        for p in range(8):
            a.i('v_lshlrev_b32 v%d, 16, v%d' % (vX + 2 * p, vQT + p))
            a.i('v_and_b32 v%d, 0xffff0000, v%d' % (vX + 2 * p + 1, vQT + p))
        a.i('v_cmp_gt_u32 vcc, 32, v0')
        for j in range(5):
            G = 128 + 8 * j
            a.i('v_pk_add_f32 %s, %s, %s' % (v2(G), v2(G), v2(G + 4)))
            a.i('v_pk_add_f32 %s, %s, %s' % (v2(G + 2), v2(G + 2), v2(G + 6)))
        for j in range(5):
            G = 128 + 8 * j
            a.i('v_pk_add_f32 %s, %s, %s' % (v2(G), v2(G), v2(G + 2)))
        for j in range(5):
            G = 128 + 8 * j
            a.i('v_add_f32 v%d, v%d, v%d' % (G, G, G + 1))
            a.i('v_mov_b32 v%d, v%d' % (G + 1, G))
        for j in range(5):
            G = 128 + 8 * j
            a.i('v_permlane32_swap_b32 v%d, v%d' % (G, G + 1))
        for j in range(5):
            G = 128 + 8 * j
            a.i('v_add_f32 v%d, v%d, v%d' % (G, G, G + 1))
            a.i('v_cndmask_b32 v%d, 0, v%d, vcc' % (G, G))
            a.i('v_cvt_pk_bf16_f32 v%d, v%d, v%d' % (G + 1, G, G))
            a.i('v_and_b32 v%d, 0xffff0000, v%d' % (G + 2, G + 1))
            a.i('v_sub_f32 v%d, v%d, v%d' % (G + 2, G, G + 2))
            a.i('v_cvt_pk_bf16_f32 v%d, v%d, v%d' % (G + 2, G + 2, G + 2))
            if j < 4:
                a.i('v_accvgpr_write_b32 a%d, v%d\nv_accvgpr_write_b32 a%d, v%d' % (aCS + 2 * j, G + 1, aCS + 2 * j + 1, G + 2))
            else:
                a.i('v_mov_b32 v%d, v%d\nv_mov_b32 v%d, v%d' % (vCS1, G + 1, vCS1 + 1, G + 2))
        self.stamp('cs')
        self.stop(2)

    def main_setup(self, sG, sR):
        L = []
        t0, t1, t2, t3, t4, t5, t6, t7 = range(sT, sT + 8)
        self.sTl, self.sNt, self.sFt = t5, t6, t7
        Tl, nt, ft = t5, t6, t7

        def e(s):
            L.extend(s.split('\n'))
        e('s_lshr_b32 s%d, s%d, 3\ns_lshl_b32 s%d, s%d, 1' % (t0, sR, t0, t0))
        e('s_and_b32 s%d, s%d, 1\ns_add_u32 s%d, s%d, s%d' % (t1, sW, Tl, t0, t1))
        e('s_and_b32 s%d, s%d, 7\ns_lshl_b32 s%d, s%d, 1\ns_lshr_b32 s%d, s%d, 1\ns_add_u32 s%d, s%d, s%d' % (
            nt, sR, nt, nt, t2, sW, nt, nt, t2))
        e('s_lshl_b32 s%d, s%d, 11\ns_add_u32 s%d, s%d, s%d' % (t2, nt, sHSo, t2, sGB))
        e('s_lshl_b32 s%d, s%d, 15\ns_add_u32 s%d, s%d, s%d' % (t3, Tl, sOwnXA, t3, sHSo))
        e('s_lshl_b32 s%d, s%d, 13\ns_add_u32 s%d, s%d, s%d\ns_add_u32 s%d, s%d, s%d' % (t4, sW, sBx0, t3, t4, sBx0, sBx0, sGB))
        e('s_xor_b32 s%d, s%d, 32768' % (sBx1, sBx0))
        e('s_lshl_b32 s%d, s%d, 12\ns_add_u32 s%d, s%d, s%d\ns_add_u32 s%d, s%d, 0x%x' % (sSTld, Tl, sSTld, sSTld, sGB, sSTld, sSTld, O_ST))
        e('s_lshr_b32 s%d, s%d, 2\ns_lshl_b32 s%d, s%d, 10\ns_add_u32 s%d, s%d, s%d' % (t3, nt, t3, t3, sOwnST, sSTld, t3))
        e('s_and_b32 s%d, s%d, 3\ns_lshl_b32 s%d, s%d, 2\ns_add_u32 s%d, s%d, s%d' % (t3, nt, t3, t3, sOwnST, sOwnST, t3))
        e('s_mov_b32 s%d, 0x%x' % (sHSb, O_HS0))
        e('s_lshl_b32 s%d, s%d, 15\ns_add_u32 s%d, s%d, s%d\ns_add_u32 s%d, s%d, 0x%x' % (sW1a, nt, sW1a, sW1a, t4, sW1a, sW1a, WF1))
        e('s_xor_b32 s%d, s%d, 32768' % (sW1b, sW1a))
        e('s_mul_i32 s%d, s%d, %d' % (t4, sW, 28 * 1024))
        e('s_mul_i32 s%d, s%d, %d\ns_add_u32 s%d, s%d, s%d\ns_add_u32 s%d, s%d, 0x%x' % (sW4a, nt, 112 * 1024, sW4a, sW4a, t4, sW4a, sW4a, WF4))
        e('s_xor_b32 s%d, s%d, 1\ns_mul_i32 s%d, s%d, %d\ns_add_u32 s%d, s%d, s%d\ns_add_u32 s%d, s%d, 0x%x' % (
            t3, nt, sW4b, t3, 112 * 1024, sW4b, sW4b, t4, sW4b, sW4b, WF4))
        e('s_add_u32 s%d, s%d, s%d\ns_add_u32 s%d, s%d, 0x%x' % (t4, t4, sGB, t4, t4, O_H2))
        e('s_mul_i32 s%d, s%d, %d\ns_add_u32 s%d, s%d, s%d' % (sH2x0, Tl, 112 * 1024, sH2x0, sH2x0, t4))
        e('s_xor_b32 s%d, s%d, 1\ns_mul_i32 s%d, s%d, %d\ns_add_u32 s%d, s%d, s%d' % (t3, Tl, sH2x1, t3, 112 * 1024, sH2x1, sH2x1, t4))
        e('s_lshr_b32 s%d, s%d, 4\ns_lshl_b32 s%d, s%d, 2\ns_add_u32 s%d, s%d, s%d' % (t3, sR, t3, t3, t3, t3, sW))
        e('s_lshl_b32 s%d, s%d, 15\ns_add_u32 s%d, s%d, s%d' % (sA3, t3, sA3, sA3, sGB))
        e('s_lshl_b32 s%d, s%d, 12\ns_add_u32 s%d, s%d, s%d\ns_add_u32 s%d, s%d, 0x%x' % (sST3, t3, sST3, sST3, sGB, sST3, sST3, O_ST))
        e('s_bfe_u32 s%d, s%d, 0x30001\ns_mul_i32 s%d, s%d, 7\ns_and_b32 s%d, s%d, 1\ns_lshl_b32 s%d, s%d, 2\ns_add_u32 s%d, s%d, s%d' % (
            ft, sR, ft, ft, t4, sR, t4, t4, ft, ft, t4))
        e('s_mul_i32 s%d, s%d, %d\ns_lshl_b32 s%d, s%d, 11\ns_add_u32 s%d, s%d, s%d\ns_add_u32 s%d, s%d, s%d\ns_add_u32 s%d, s%d, 0x%x' % (
            sH2o, t3, 112 * 1024, t2, ft, sH2o, sH2o, t2, sH2o, sH2o, sGB, sH2o, sH2o, O_H2))
        e('s_add_u32 s%d, s%d, 6144\ns_cmp_eq_u32 s%d, 0\ns_cselect_b32 s%d, s%d, 0x%x' % (sH2o3, sH2o, t4, sH2o3, sH2o3, OOB))
        e('s_add_u32 s%d, s%d, 0x%x' % (t4, sGB, O_FL))
        e('s_lshl_b32 s%d, s%d, 8\ns_add_u32 s%d, s%d, s%d\ns_lshl_b32 s%d, s%d, 2\ns_add_u32 s%d, s%d, s%d' % (
            sFA, Tl, sFA, sFA, t4, t2, nt, sFA, sFA, t2))
        e('s_lshl_b32 s%d, s%d, 8\ns_add_u32 s%d, s%d, s%d' % (t3, t3, t3, t3, t4))
        e('s_and_b32 s%d, s%d, 15\ns_lshl_b32 s%d, s%d, 2\ns_add_u32 s%d, s%d, s%d\ns_add_u32 s%d, s%d, 128' % (
            t2, sR, t2, t2, sFB, t3, t2, sFB, sFB))
        x0, x1, x2 = 108, 109, 110
        e('v_and_b32 v%d, 15, v0\nv_lshlrev_b32 v%d, 2, v%d' % (x0, x0, x0))
        e('v_add_u32 v%d, s%d, v%d' % (vP3, t3, x0))
        e('s_lshl_b32 s%d, s%d, 8\ns_add_u32 s%d, s%d, s%d' % (t3, t0, t3, t3, t4))
        e('v_bfe_u32 v%d, v0, 4, 1\nv_lshl_add_u32 v%d, v%d, 8, v%d' % (x1, x0, x1, x0))
        e('v_add_u32 v%d, s%d, v%d' % (vPA, t3, x0))
        e('v_and_b32 v%d, 3, v0\nv_lshlrev_b32 v%d, 2, v%d' % (x0, x0, x0))
        e('s_lshl_b32 s%d, s%d, 4\ns_add_u32 s%d, s%d, s%d' % (t2, sW, t3, t3, t2))
        e('v_add_u32 v%d, s%d, v%d' % (x0, t3, x0))
        e('v_lshl_add_u32 v%d, v%d, 8, v%d\nv_add_u32 v%d, 128, v%d' % (vP4, x1, x0, vP4, vP4))
        e('s_mul_i32 s%d, s%d, 3\ns_sub_u32 s%d, s%d, 1\ns_add_u32 s%d, s%d, s%d' % (t2, t1, t2, t2, t4, t0, t2))
        e('s_cmp_lt_u32 s%d, 8\ns_cselect_b32 s%d, s%d, 0\ns_cselect_b32 s%d, 0, 1' % (t4, t2, t2, t4))
        e('s_lshl_b32 s%d, s%d, 8' % (t2, t2))
        e('v_add_u32 v%d, s%d, v%d' % (x0, t2, x0))
        e('v_cmp_gt_u32 vcc, 32, v0\ns_nop 1\nv_cndmask_b32 v%d, v%d, v%d, vcc' % (vPC, x0, vPA))
        e('s_lshr_b32 s%d, s%d, 1\ns_lshl_b32 s%d, s%d, 1\ns_add_u32 s%d, s%d, 1' % (t2, sW, t2, t2, t2, t2))
        e('s_brev_b32 s%d, s%d\ns_cmp_eq_u32 s%d, 0\ns_cselect_b32 s%d, s%d, s%d' % (t3, t2, t1, t2, t2, t3))
        e('s_mul_i32 s%d, s%d, s%d' % (t2, t2, t4))
        e('s_mov_b32 vcc_lo, s%d\ns_mov_b32 vcc_hi, s%d' % (t2, t2))
        e('s_lshl_b32 s%d, s%d, 1\ns_add_u32 s%d, s%d, s%d\ns_sub_u32 s%d, s%d, 1' % (t3, t1, t3, t3, sG, t3, t3))
        e('s_lshl_b32 s%d, s%d, 15\ns_sub_u32 s%d, 0x%x, s%d' % (t4, Tl, t4, O_HB - O_HS0, t4))
        e('s_cmp_lt_u32 s%d, 8\ns_cselect_b32 s%d, s%d, 0\ns_cselect_b32 s%d, s%d, 0x%x' % (t3, t2, t2, t4, t4, OOB))
        e('s_mov_b32 s%d, s%d\ns_mov_b32 s%d, s%d' % (sHM, t2, sHM + 1, t2))
        e('v_and_b32 v%d, 0x210, v%d\nv_add_u32 v%d, s%d, v%d' % (x0, vL16, x0, t4, x0))
        e('v_cndmask_b32 v%d, v%d, v%d, vcc' % (vHL, vL16, x0))
        e('v_mov_b32 v%d, %d\nv_cndmask_b32 v%d, 0, v%d, vcc' % (x0, 128 - (O_HS1 - O_HS0), vHLd, x0))
        e('s_lshr_b32 s%d, s%d, 3\ns_add_u32 s%d, s%d, 1\ns_sub_u32 s%d, 0, s%d' % (t2, nt, t2, t2, t3, t2))
        e('s_bitcmp1_b32 s%d, 2\ns_cselect_b32 s%d, s%d, s%d\ns_cselect_b32 s%d, -1, 1' % (nt, t2, t3, t2, t3))
        e('s_lshl_b32 s%d, s%d, 5\ns_add_u32 s%d, s%d, s%d' % (t4, Tl, t2, t2, t4))
        e('v_and_b32 v%d, 31, v0\nv_add_u32 v%d, s%d, v%d' % (x0, x0, t2, x0))
        e('v_and_b32 v%d, 0x200, v%d' % (x1, vL16))
        e('v_and_b32 v%d, 31, v%d\nv_lshl_add_u32 v%d, v%d, 4, v%d' % (x2, x0, x2, x2, x1))
        e('v_lshrrev_b32 v%d, 5, v%d\nv_lshl_add_u32 v%d, v%d, 15, v%d' % (vHS, x0, vHS, vHS, x2))
        e('v_and_b32 v%d, 0x210, v%d' % (x2, x2))
        e('v_mov_b32 v%d, 0x%x' % (x1, OOB))
        e('v_cmp_gt_u32 vcc, 256, v%d\ns_nop 1' % x0)
        e('v_cndmask_b32 v%d, v%d, v%d, vcc\nv_cndmask_b32 v%d, v%d, v%d, vcc' % (vHS, x1, vHS, vHB, x2, x1))
        e('s_add_u32 s%d, s%d, s%d\ns_add_u32 s%d, s%d, s%d' % (t4, Tl, t3, t3, sG, t3))
        e('s_cmp_ge_u32 s%d, 8\ns_cselect_b32 s%d, 1, 0\ns_cmp_lt_u32 s%d, 8\ns_cselect_b32 s%d, s%d, 0' % (
            t4, sHaloP, t3, sHaloP, sHaloP))
        e('s_lshl_b32 s%d, s%d, 21\ns_lshl_b32 s%d, s%d, 11\ns_add_u32 s%d, s%d, s%d\ns_add_u32 s%d, s%d, 0x%x' % (
            sHBo, t3, t2, nt, sHBo, sHBo, t2, sHBo, sHBo, O_HB))
        e('s_lshl_b32 s%d, s%d, 11\ns_add_u32 s%d, s%d, %d\nv_add_u32 v%d, s%d, v%d' % (t2, sW, t2, t2, L_RS, vRB, t2, vL16))
        return L

    def out_addr(self, vd, vt, sd, st):
        return ['v_and_b32 v%d, 31, v0' % vd, 'v_lshlrev_b32 v%d, 10, v%d' % (vd, vd),
                'v_lshrrev_b32 v%d, 5, v0' % vt, 'v_lshl_add_u32 v%d, v%d, 4, v%d' % (vd, vt, vd),
                's_lshr_b32 s%d, s%d, 3' % (sd, sGB), 's_and_b32 s%d, s%d, 0x38000' % (st, sOwnXA),
                's_add_u32 s%d, s%d, s%d' % (sd, sd, st), 's_bfe_u32 s%d, s%d, 0x4000b' % (st, sOwnXA),
                's_lshl_b32 s%d, s%d, 6' % (st, st), 's_add_u32 s%d, s%d, s%d' % (sd, sd, st)]

    def early_stream(self, vQT):
        t0, t1, t2 = sT, sT + 1, sT + 2
        L = []
        L.append(self.out_addr(108, 109, t0, t1) + [
            'buffer_load_dwordx4 %s, v108, s[%d:%d], s%d offen' % (v4(vQT), rQ, rQ + 3, t0)])
        L.append(['buffer_load_dwordx4 %s, v108, s[%d:%d], s%d offen offset:32' % (v4(vQT + 4), rQ, rQ + 3, t0)])
        pre = ['v_and_b32 v109, 31, v0', 'v_lshlrev_b32 v109, 6, v109', 'v_lshrrev_b32 v110, 5, v0',
               'v_lshl_add_u32 v109, v110, 5, v109',
               's_lshl_b32 s%d, s%d, 11' % (t0, self.sFt), 's_add_u32 s%d, s%d, 0x%x' % (t0, t0, CSP),
               's_add_u32 s%d, s%d, 4096' % (t1, t0),
               's_lshl_b32 s%d, s%d, 11' % (t2, self.sNt), 's_add_u32 s%d, s%d, 0x%x' % (t2, t2, CSP + F * 64)]
        for j in range(5):
            so, off = [(t0, 0), (t0, 2048), (t1, 0), (t1, 2048), (t2, 0)][j]
            for q in range(2):
                L.append(pre + ['buffer_load_dwordx4 %s, v109, %s, s%d offen offset:%d sc1' % (
                    v4(128 + 8 * j + 4 * q), WS, so, off + 16 * q)])
                pre = []
        L += self.small_w_loads(0)
        pre = ['s_add_u32 s%d, s%d, s%d' % (t0, self.sFt, sW), 's_lshl_b32 s%d, s%d, 15' % (t0, t0),
               's_add_u32 s%d, s%d, 0x%x' % (t0, t0, WF3), 's_lshl_b32 m0, s%d, 15' % sW]
        for j in range(32):
            g = pre
            pre = []
            if j % 4 == 0 and j:
                g = ['s_add_u32 m0, m0, 4096', 's_add_u32 s%d, s%d, 4096' % (t0, t0)]
            L.append(g + ['buffer_load_dwordx4 v%d, %s, s%d offen offset:%d sc1 lds' % (vL16, WS, t0, 1024 * (j % 4))])
        return L

    def mainloop(self):
        a = self.a
        t0, t1, t2, t3, t4 = range(sT, sT + 5)
        a.label('L_loop')
        a.forget()
        self.stats_part(vX, vT + 2)
        a.i('v_max_u32 v%d, 1, v%d' % (vT + 2, vT + 2))
        a.i('s_lshl_b32 s%d, s%d, 15\ns_add_u32 s%d, s%d, 0x%x' % (t0, sLay, t0, t0, O_SG - O_ST))
        a.i('s_add_u32 s%d, s%d, s%d\ns_add_u32 s%d, s%d, s%d' % (t1, t0, sOwnST, t0, t0, sSTld))
        self.st(['buffer_store_dword v%d, v%d, %s, s%d offen' % (vT + 2, vL16, WS, t1)])
        self.stamp('spub')
        a.i('s_cmp_lg_u32 s%d, 0' % sLay)
        a.i('s_cbranch_scc1 L_noy')
        a.i('v_and_b32 v%d, 31, v0\nv_lshlrev_b32 v%d, 2, v%d' % (vT + 2, vT + 2, vT + 2))
        a.i('v_lshrrev_b32 v%d, 5, v0\nv_lshl_add_u32 v%d, v%d, 14, v%d' % (vT + 3, vT + 2, vT + 3, vT + 2))
        a.i('s_lshr_b32 s%d, s%d, 11\ns_bfe_u32 s%d, s%d, 0x3000f\ns_lshl_b32 s%d, s%d, 7\ns_add_u32 s%d, s%d, s%d' % (
            t1, sGB, t2, sOwnXA, t2, t2, t1, t1, t2))
        a.i('s_bfe_u32 s%d, s%d, 0x4000b\ns_lshl_b32 s%d, s%d, 17\ns_add_u32 s%d, s%d, s%d\ns_add_u32 s%d, s%d, 0x%x' % (
            t2, sOwnXA, t2, t2, t1, t1, t2, t1, t1, YB))
        L = []
        for p in range(8):
            L.append('s_add_u32 s%d, s%d, %d' % (t2, t1, (4 * (p >> 1) + (p & 1)) * 8192))
            L.append('buffer_load_dword v%d, v%d, %s, s%d offen sc1' % (vY + p, vT + 2, WS, t2))
        self.tagged_gather(L, range(vY, vY + 8), 'ygat')
        if STAMP:
            a.i('s_branch L_noy2')
            a.label('L_noy')
            self.stamp('-')
            self.names.pop()
            a.label('L_noy2')
        else:
            a.label('L_noy')
        YF, G = vACC, vACC + 16
        for p in range(8):
            a.i('v_lshlrev_b32 v%d, 16, v%d' % (YF + 2 * p, vY + p))
            a.i('v_and_b32 v%d, 0xffff0000, v%d' % (YF + 2 * p + 1, vY + p))
        self.tagged_gather(self.stat_loads(G, t0), range(G, G + 16), 'sgat')
        self.emit(self.stats_fin(G))
        a.i('v_add_f32 v%d, %s, v%d' % (G + 1, f32(EPS), G + 1))
        a.i('v_rsq_f32 v%d, v%d' % (G + 2, G + 1))
        a.i('v_mul_f32 v%d, v%d, v%d' % (G + 3, G, G + 2))
        PT = vACC + 32
        for p in range(8):
            a.i('v_pk_fma_f32 %s, %s, %s, %s op_sel:[0,0,1] op_sel_hi:[1,0,1]' % (v2(PT + 2 * p), v2(vX + 2 * p), v2(G + 2), v2(G + 2)))
        for p in range(8):
            a.i('v_pk_fma_f32 %s, %s, %s, %s' % (v2(vX + 2 * p), v2(PT + 2 * p), v2(YF + 2 * p), v2(vX + 2 * p)))
        PK = vACC + 48

        def publish_tile(X):
            self.pack(PK, X, 8)
            self.st(['buffer_store_dwordx4 %s, v%d, %s, s%d offen offset:%d' % (v4(PK + 4 * q), vL16, WS, sOwnXA, 1024 * q)
                     for q in range(2)])
            self.stats_part(X, vT + 2)
            self.st(['buffer_store_dword v%d, v%d, %s, s%d offen' % (vT + 2, vL16, WS, sOwnST)])
        publish_tile(vX)
        self.flag(sFA)
        self.stop(3)

        self.poll(vPA)
        G = vACC
        self.emit(self.stat_loads(G, sSTld))
        L1 = self.frag_loads(lambda j: vB + 8 * j + 4, 'v', sBx1, 8, t3)
        L0 = self.frag_loads(lambda j: vB + 8 * j, 'v', sBx0, 8, t4)
        stat = self.stats_fin(G, pk=False) + self.mu_frag(G) + [
            'v_add_f32 v%d, %s, v%d' % (G + 2, f32(EPS), G + 1),
            'v_rsq_f32 v%d, v%d' % (vRN, G + 2),
            'v_mov_b32 v%d, %s' % (G + 4, f32(EPS * EPS)),
            'v_fmac_f32 v%d, %s, v%d' % (G + 4, f32(1.0 + EPS), G + 1),
            'v_mul_f32 v%d, v%d, v%d' % (vRN + 1, G, vRN)] + self.gelu_consts(G + 4)
        wsr = lambda ks, w: v4(vWS + 8 * ks + 4 * w)
        bsr = lambda b, ks: vB + 8 * ks + 4 * b
        bg = self.small_w_loads(WF2 - WF1)
        self.ksplit(8, wsr, vACC, L1, L0, bsr, fill1=stat,
                    first0='v_mfma_f32_32x32x8_bf16 %s, %s, %s, 0' % (v16(vACC), v2(vCS1), v2(vMU)),
                    bg=bg, bgfree=lambda i: i // 2 + 1)
        self.paced(self.gelu_pk(vACC, 16, vACC + 16), bg, 8)
        self.emit(bg)
        self.pack(PK, vACC, 8)
        a.i('s_add_u32 s%d, s%d, s%d' % (t0, sHSo, sHSb))
        self.st(['buffer_store_dwordx4 %s, v%d, %s, s%d offen offset:%d' % (v4(PK + 4 * q), vHS, WS, t0, 1024 * q)
                 for q in range(2)])
        a.alt('s_cmp_lg_u32 s%d, 0' % sHaloP, 's_cbranch_scc1', [],
              ['v_max_u32 v%d, 1, v%d' % (PK + 8 + p, PK + p) for p in range(8)] +
              ['buffer_store_dwordx4 %s, v%d, %s, s%d offen offset:%d sc1' % (v4(PK + 8 + 4 * q), vHB, WS, sHBo, 1024 * q)
               for q in range(2)])
        for p in range(8):
            a.i('v_pk_fma_f32 %s, %s, %s, %s op_sel:[0,0,1] op_sel_hi:[1,0,1]' % (v2(vACC + 2 * p), v2(vX + 2 * p), v2(vRN), v2(vRN)))
        self.flag(sFA)
        self.stop(4)

        a.i('s_add_u32 s%d, s%d, s%d\ns_add_u32 s%d, s%d, s%d' % (t1, sBx0, sHSb, t2, sBx1, sHSb))
        self.poll(vPC)
        L1 = self.frag_loads(lambda j: vB + 8 * j + 4, 'v', t2, 8, t3)
        L0 = self.frag_loads(lambda j: vB + 8 * j, 'v', t1, 8, t4, vHL)

        def halo():
            lh, lr = a.newlabel('HALO'), a.newlabel('HRET')
            a.i('s_cmp_lg_u32 s%d, 0' % sHM)
            a.rawbr('s_cbranch_scc1 %s' % lh)
            sv = (list(a.hist), list(a.vm), list(a.lg), a.out)
            a.out = [lh + ':']
            self.emit(self.frag_loads(lambda j: vB + 8 * j, 'v', t1, 8, t0, vHL))
            self.tick()
            a.i('s_waitcnt vmcnt(0)')
            self.minchain(vT + 1, [vB + 8 * j + q for j in range(8) for q in range(4)])
            a.i('v_cmp_eq_u32 vcc, 0, v%d' % (vT + 1))
            a.i('s_and_b64 vcc, vcc, s[%d:%d]' % (sHM, sHM + 1))
            a.i('s_cbranch_scc1 %s' % lh)
            a.i('s_branch %s' % lr)
            a.ool.extend(a.out)
            a.hist, a.vm, a.lg, a.out = sv
            a.out.append(lr + ':')
        self.ksplit(8, wsr, vACC, L1, L0, bsr, mid=halo)
        publish_tile(vACC)
        for p in range(8):
            a.i('v_pk_add_f32 %s, %s, %s' % (v2(vX + 2 * p), v2(vX + 2 * p), v2(vACC + 2 * p)))
        self.flag(sFA)
        self.stop(5)

        rd = lambda n: 'ds_read_b128 %s, v%d offset:%d' % (v4(aRING + 4 * (n % NRING), 'a'), vT + 12 + (seq[n][0] >> 1),
                                                          (seq[n][0] & 1) * 32768 + 1024 * seq[n][1])
        seq = []
        for ks in range(32):
            seq += [(0, ks), (1, ks)]
        seq += [(2, ks) for ks in range(32)] + [(3, ks) for ks in range(32)]
        a.i('v_mov_b32 v%d, v%d\nv_add_u32 v%d, 65536, v%d' % (vT + 12, vL16, vT + 13, vL16))
        AHEAD = NRING - 1
        for n in range(AHEAD):
            a.i(rd(n))
        sv = list(a.lg)
        self.poll(vP3)
        a.lg = sv
        G = vACC + 48
        self.emit(self.stat_loads(G, sST3))
        LA = self.frag_loads(lambda j: vB + 4 * j, 'v', sA3, 32, t3)
        for _ in range(AHEAD_LD):
            self.emit(LA.pop(0))
        stat = self.stats_fin(G, pk=False) + self.mu_frag(G) + [
            'v_add_f32 v%d, %s, v%d' % (G + 4, f32(EPS), G + 1)] + self.gelu_consts(G + 4)
        a.i('s_add_u32 s%d, s%d, 4096' % (t0, sH2o))
        PK3 = vT + 4

        def h2store(ft):
            so, off = [(sH2o, 0), (sH2o, 2048), (t0, 0), (sH2o3, 0)][ft]
            return ('ST', ['buffer_store_dwordx4 %s, v%d, %s, s%d offen offset:%d' % (v4(PK3 + 4 * q), vL16, WS, so, off + 1024 * q)
                           for q in range(2)])

        def epi(ft, pk):
            acc = vACC + 16 * ft
            L = self.gelu_pk(acc, 16, vB) if pk else self.gelu_plain(acc, 16, vT)
            for p in range(8):
                L.append('v_cvt_pk_bf16_f32 v%d, v%d, v%d' % (PK3 + p, acc + 2 * p, acc + 2 * p + 1))
            L.append(h2store(ft))
            return L

        put = self.put

        def csm(ft):
            acc = vACC + 16 * ft
            a.i('v_mfma_f32_32x32x8_bf16 %s, %s, %s, %s' % (v16(acc), v2(aCS + 2 * ft, 'a'), v2(vMU), v16(acc)))

        w4 = self.w4_loads()
        filler = list(stat)
        for n, (ft, ks) in enumerate(seq):
            acc = vACC + 16 * ft
            if n + AHEAD < len(seq):
                a.i(rd(n + AHEAD))
            a.i('v_mfma_f32_32x32x16_bf16 %s, %s, %s, %s' % (
                v16(acc), v4(aRING + 4 * (n % NRING), 'a'), v4(vB + 4 * ks), v16(acc) if ks else '0'))
            bud = 20
            if LA:
                if n % 2 == 0:
                    self.emit(LA.pop(0))
                    bud -= 8
            elif n % 4 == 0 and w4:
                g = w4[0] + w4[1]
                del w4[:2]
                self.l1only(g)
                bud -= 8
            if n == 63:
                while filler:
                    put(filler.pop(0))
                csm(0)
                csm(1)
                filler = epi(0, False) + epi(1, False)
                bud = 0
            if n == 64:
                bud = 0
            if n in (95, 127):
                csm(ft)
            while filler and bud > 0:
                bud -= put(filler.pop(0))
        self.stamp('g3m')
        bg = [('L1', w4[i] + w4[i + 1]) for i in range(0, len(w4), 2)]
        self.paced(filler + epi(2, True) + epi(3, True), bg, 16)
        assert not bg
        self.flag(sFB)
        self.stop(6)

        self.poll(vP4)
        WIN = 16
        b4 = lambda b, ks: vB + 4 * ((ks + 28 * (1 - b)) % WIN)
        L0 = self.frag_loads(lambda j: b4(0, j), 'v', sH2x0, 28, t3)
        L1 = self.frag_loads(lambda j: b4(1, j), 'v', sH2x1, 28, t4)
        w1 = self.small_w_loads(0)
        bg = [('L1', w1[i] + w1[i + 1]) for i in range(0, 16, 2)]
        self.ksplit(28, lambda ks, w: v4(8 * ks + 4 * w, 'a'), vX, L1, L0, b4, bg=bg)
        for x in bg:
            self.put(x)
        a.i('s_cmp_lg_u32 s%d, 0' % sLay)
        a.i('s_cbranch_scc1 L_final')
        a.i('s_mov_b32 s%d, 1\ns_mov_b32 s%d, 0x%x\ns_add_u32 s%d, s%d, 128' % (sLay, sHSb, O_HS1, sHBo, sHBo))
        a.i('v_add_u32 v%d, v%d, v%d' % (vHL, vHL, vHLd))
        if STAMP:
            a.i('v_mov_b32 v63, v31\nv_mov_b32 v31, 0\ns_mov_b32 s98, 0')
        a.i('s_branch L_loop')
        a.label('L_final')
        self.pack(PK, vX, 8)
        self.emit(self.out_addr(vT, vT + 1, t0, t1))
        for t2 in range(2):
            b = PK + 4 * t2
            a.i('v_permlane32_swap_b32 v%d, v%d' % (b, b + 2))
            a.i('v_permlane32_swap_b32 v%d, v%d' % (b + 1, b + 3))
            a.i('buffer_store_dwordx4 %s, v%d, s[%d:%d], s%d offen offset:%d' % (v4(b), vT, rOUT, rOUT + 3, t0, 32 * t2))
        a.i('s_or_b32 s%d, s2, s%d\ns_mov_b32 s%d, 0x%x\nv_mov_b32 v%d, s%d' % (t0, sW, t1, EPO, vT + 2, sTag))
        a.alt('s_cmp_eq_u32 s%d, 0' % t0, 's_cbranch_scc1', [], [
            's_mov_b64 exec, 1', 'buffer_store_dword v%d, off, %s, s%d sc1' % (vT + 2, WS, t1), 's_mov_b64 exec, -1'])
        self.dump()
        a.label('L_end')
        a.i('s_endpgm')
        a.emit_ool()

    def gen(self):
        a = self.a
        name = KN + '_kernel'
        hdr = [l for l in open('ref_hdr.txt').read().split('\n')
               if l.startswith(';') and '@launch' not in l and 'Override' not in l and 'grid=ceil' not in l]
        for l in hdr:
            a.raw(l)
        a.raw('; @launch grid=(256,1,1) block=(256,1,1) lds=%d' % LDS_BYTES)
        a.raw('.amdgcn_target "amdgcn-amd-amdhsa--gfx950"\n.text')
        a.raw(kernel_header(name))
        self.prologue()
        self.nprol = len(self.names)
        self.mainloop()
        a.raw('.section .rodata,"a"')
        a.raw(kernel_desc(name, 256, 256))
        return a.text()


if __name__ == '__main__':
    path = sys.argv[1] if len(sys.argv) > 1 else 'cdna_kernels/%s.s' % KN
    for o in sys.argv[2:]:
        if o == 'stamp':
            STAMP = True
        elif o == 'slow':
            FORCE_SLOW = True
        elif o.startswith('stop='):
            STOP = int(o[5:])
    g = Gen()
    open(path, 'w').write(g.gen())
    if STAMP:
        n = g.names
        loop = n[g.nprol:-3]
        open(path + '.names', 'w').write(' '.join(n[:g.nprol] + loop + loop + n[-3:]))
```

```python
import sys
import struct
from asmgen import *

KN = 'interleave_layers__ssm_conv_h3__mixer_s_mlp__prompt'
S, D, F = 2048, 512, 1792

GSZ = 0x200000
O_XA = 0x0
O_HS = 0x40000
O_H2 = 0x80000
O_KVT = 0x80000
O_ST = 0x1A0000
O_Z = 0x1C0000
O_SG = O_Z
O_HB = O_Z + 0x10000
O_FL = O_Z + 0x18000
WF1 = 0x1000000
WF2 = 0x1080000
WF4 = 0x1100000
CSP = 0x12C0000
EPO = 0x12D0000
RF = 0x12E0000
TAGC = 0x9E3779B0
WS_BYTES = 268435456
OOB = 0x40000000

OPT = dict(rfcc=1, nA=0, nB=8, ah1=6, ah2=6, ah3=6, ah4=6, w4g1=8, w4g2=12, cpf=1, tlb=1, cstep=2, w4st=4, ypos=16, h2sc=0, osc=0, fmod=0, wb=0, wbks=28)
STAMP = False
STOP = 0
FORCE_SLOW = False
STAMP_OFF = 0x8000000
STAMP_GROUPS = [[(0, 256)]]

KA = dict(q=0, k=8, v=16, sk=24, ssm_k=32, ssm_D=40, bx=48, w1=56, w2=64, w3=72, w4=80, out=88, dbg=96, ws=104)

LDS_BYTES = 163840
L_RS = 131072
CV_KVR = 0
CV_KVS = 4608
CV_E = 9216
CV_OOFF = 4160
CV_CHS = 8320

GC0 = -2.0 * 1.4426950408889634 * 0.7978845608028654
GC1 = GC0 * 0.044715
EPS = 1e-5


def f32(x):
    return '0x%08x' % struct.unpack('<I', struct.pack('<f', x))[0]


def v4(i, k='v'):
    return '%s[%d:%d]' % (k, i, i + 3)


def v2(i, k='v'):
    return '%s[%d:%d]' % (k, i, i + 1)


def v16(i):
    return 'v[%d:%d]' % (i, i + 15)


rDBG, rWS, rOUT, rK, rV, rSK, rSSM, rWSRC, rW3, rQ = 4, 8, 12, 16, 20, 24, 28, 32, 36, 40
WS = 's[8:11]'
(sW, sMode, sPH, sTO, sLay, sOwnXA, sOwnST, sSTld, sBx0, sBx1, sMH, sHSo, sW1a, sW1b, sW4a, sW4b, sA3, sST3,
 sH2o, sH2o3, sH2x0, sH2x1, sFA, sFB, sHaloP, sSelLo, sSelHi, sGB, sHBo, sTag) = range(44, 74)
sHM = 74
sKW = 76
sDp = 84
sT = 76
sP = 86
vL16, vRB, vHS, vHB, vHL, vPA, vPC, vP3, vP4 = 1, 2, 3, 4, 5, 6, 7, 8, 9
vCS1 = 10
vMU = 12
vHLd = 14
vTRb = 15
vT = 16
vX = 32
vY = 48
vRN = 56
vK = 58
vIR = 60
vACC = 64
vB = 128
vWS = 192
aCS = 224
aRING = 232
NRING = 6


class Gen:
    def __init__(self):
        self.a = Asm()
        self.nst = 0
        self.names = []

    def stamp(self, name, real=False):
        if STAMP:
            a = self.a
            a.i('%s s[100:101]' % ('s_memrealtime' if real else 's_memtime'))
            a.i('s_waitcnt lgkmcnt(0)')
            a.i('s_mov_b32 s99, m0\ns_mov_b32 m0, s98')
            a.i('v_writelane_b32 v31, s100, m0')
            a.i('s_mov_b32 m0, s99')
            a.i('s_add_u32 s98, s98, 1')
            self.names.append(name)

    def dump(self):
        if STAMP:
            a = self.a
            self.stamp('end')
            a.i('s_waitcnt vmcnt(0)')
            self.stamp('drain')
            self.stamp('r', True)
            a.i('s_lshl_b32 s99, s2, 2')
            a.i('s_add_u32 s99, s99, s%d' % sW)
            a.i('s_lshl_b32 s99, s99, 9')
            a.i('s_add_u32 s99, s99, 0x%x' % STAMP_OFF)
            a.i('v_lshlrev_b32 v30, 2, v0')
            a.i('buffer_store_dword v63, v30, %s, s99 offen' % WS)
            a.i('buffer_store_dword v31, v30, %s, s99 offen offset:256' % WS)

    def stop(self, n):
        if STOP == n:
            self.a.i('s_waitcnt vmcnt(0)')
            self.a.i('s_endpgm')

    def srd(self, d, nbytes):
        self.a.i('s_mov_b32 s%d, 0x%x' % (d + 2, nbytes))
        self.a.i('s_mov_b32 s%d, 0x20000' % (d + 3))

    def st(self, stores, sm=sMode):
        self.a.alt('s_cmp_lg_u32 s%d, 0' % sm, 's_cbranch_scc1', [x + ['', ' nt', ' sc0', ' sc0 nt'][OPT['fmod']] if 'x4' in x and ', v%d, s[' % vHS not in x else x for x in stores], [x + ' sc1' if x.startswith('buffer_store') else x for x in stores])

    def l1only(self, L, sym=False):
        fast = []
        if sym:
            fast = ['buffer_load_dword v62, off, %s, s%d ; dummy' % (WS, sFA) for x in L if x.startswith('buffer_')]
        self.a.alt('s_cmp_eq_u32 s%d, 0' % sLay, 's_cbranch_scc1', fast, L)

    def flag(self, sF, inc=True):
        a = self.a
        a.i('s_add_u32 s%d, s%d, 1' % (sPH, sPH))
        a.i('v_mov_b32 v%d, s%d' % (vT, sPH))
        a.i('s_mov_b64 exec, 1')
        self.stamp('epi')
        a.i('s_waitcnt vmcnt(0)')
        self.st(['buffer_store_dword v%d, off, %s, s%d' % (vT, WS, sF)])
        a.i('s_mov_b64 exec, -1')
        self.stamp('drain')

    def tick(self):
        self.a.i('s_sub_u32 s%d, s%d, 1' % (sTO, sTO))
        self.a.rawbr('s_cbranch_scc1 L_end')

    def poll(self, vaddr):
        a = self.a
        lp = a.newlabel('POLL')
        a.label(lp)
        a.i('buffer_load_dword v%d, v%d, %s, 0 offen sc1' % (vT + 1, vaddr, WS))
        self.tick()
        a.i('s_waitcnt vmcnt(0)')
        a.i('v_cmp_gt_u32 vcc, s%d, v%d' % (sPH, vT + 1))
        a.i('s_cmp_eq_u64 vcc, 0')
        a.rawbr('s_cbranch_scc0 %s' % lp)
        a.forget()
        self.stamp('poll')

    def minchain(self, t, regs):
        a = self.a
        regs = list(regs)
        a.i('v_min3_u32 v%d, v%d, v%d, v%d' % (t, regs[0], regs[1], regs[2]))
        k = 3
        while k + 1 < len(regs):
            a.i('v_min3_u32 v%d, v%d, v%d, v%d' % (t, t, regs[k], regs[k + 1]))
            k += 2
        if k < len(regs):
            a.i('v_min_u32 v%d, v%d, v%d' % (t, t, regs[k]))

    def tagged_gather(self, loads, regs, name):
        a = self.a
        lp = a.newlabel('TG')
        a.label(lp)
        a.forget()
        for x in loads:
            a.i(x)
        self.tick()
        self.minchain(vT + 1, regs)
        a.i('v_cmp_eq_u32 vcc, 0, v%d' % (vT + 1))
        a.i('s_cmp_eq_u64 vcc, 0')
        a.rawbr('s_cbranch_scc0 %s' % lp)
        a.forget()
        self.stamp(name)

    def frag_loads(self, dst, kind, sbase, n, st, vaddr=vL16):
        L = []
        for j in range(n):
            g = []
            if j % 4 == 0 and j:
                g.append('s_add_u32 s%d, s%d, %d' % (st, sbase, 1024 * j))
            g.append('buffer_load_dwordx4 %s, v%d, %s, s%d offen offset:%d sc1' % (
                v4(dst(j), kind), vaddr, WS, st if j >= 4 else sbase, 1024 * (j % 4)))
            L.append(g)
        return L

    def emit(self, L):
        for g in L:
            if isinstance(g, str):
                self.a.i(g)
            else:
                for x in g:
                    self.a.i(x)

    def pack(self, dst, src, n):
        for p in range(n):
            self.a.i('v_cvt_pk_bf16_f32 v%d, v%d, v%d' % (dst + p, src + 2 * p, src + 2 * p + 1))

    def stats_part(self, X, t):
        a = self.a
        a.i('v_pk_add_f32 %s, %s, %s' % (v2(t), v2(X), v2(X + 2)))
        a.i('v_pk_mul_f32 %s, %s, %s' % (v2(t + 2), v2(X), v2(X)))
        a.i('v_pk_fma_f32 %s, %s, %s, %s' % (v2(t + 2), v2(X + 2), v2(X + 2), v2(t + 2)))
        for p in range(2, 8):
            a.i('v_pk_add_f32 %s, %s, %s' % (v2(t), v2(t), v2(X + 2 * p)))
            a.i('v_pk_fma_f32 %s, %s, %s, %s' % (v2(t + 2), v2(X + 2 * p), v2(X + 2 * p), v2(t + 2)))
        a.i('v_add_f32 v%d, v%d, v%d' % (t, t, t + 1))
        a.i('v_add_f32 v%d, v%d, v%d' % (t + 2, t + 2, t + 3))
        a.i('v_permlane32_swap_b32 v%d, v%d' % (t, t + 2))
        a.i('v_add_f32 v%d, v%d, v%d' % (t, t, t + 2))

    def stat_loads(self, G, soff):
        return ['buffer_load_dwordx4 %s, v%d, %s, s%d offen offset:%d sc1' % (v4(G + 4 * q), vL16, WS, soff, 1024 * q)
                for q in range(4)]

    def stats_fin(self, G, pk=True):
        L = []
        if pk:
            for w in (8, 4, 2):
                for p in range(0, w, 2):
                    L.append('v_pk_add_f32 %s, %s, %s' % (v2(G + p), v2(G + p), v2(G + p + w)))
        else:
            for w in (8, 4, 2):
                for p in range(w):
                    L.append('v_add_f32 v%d, v%d, v%d' % (G + p, G + p, G + p + w))
        L += ['v_add_f32 v%d, v%d, v%d' % (G, G, G + 1),
              'v_mov_b32 v%d, v%d' % (G + 1, G),
              'v_permlane32_swap_b32 v%d, v%d' % (G, G + 1),
              'v_mul_f32 v%d, %s, v%d' % (G, f32(-1.0 / 512), G),
              'v_mul_f32 v%d, %s, v%d' % (G + 1, f32(1.0 / 512), G + 1),
              'v_fma_f32 v%d, -v%d, v%d, v%d' % (G + 1, G, G, G + 1),
              'v_max_f32 v%d, 0, v%d' % (G + 1, G + 1)]
        return L

    def mu_frag(self, G):
        return ['v_cvt_pk_bf16_f32 v%d, v%d, v%d' % (G + 2, G, G),
                'v_and_b32 v%d, 0xffff0000, v%d' % (G + 2, G + 2),
                'v_sub_f32 v%d, v%d, v%d' % (G + 3, G, G + 2),
                'v_cvt_pk_bf16_f32 v%d, v%d, v%d' % (vMU, G + 2, G + 3),
                'v_mov_b32 v%d, v%d' % (vMU + 1, vMU)]

    def gelu_consts(self, q):
        return ['v_rsq_f32 v%d, v%d' % (q + 1, q),
                'v_mul_f32 v%d, v%d, v%d' % (vIR, q, q + 1),
                'v_mul_f32 v%d, %s, v%d' % (vK + 1, f32(GC0), q + 1),
                'v_mul_f32 v%d, v%d, v%d' % (vK, q + 1, q + 1),
                'v_mul_f32 v%d, %s, v%d' % (q + 1, f32(GC1), q + 1),
                'v_mul_f32 v%d, v%d, v%d' % (vK, vK, q + 1),
                'v_mov_b32 v%d, v%d' % (vIR + 1, vIR)]

    def gelu_plain(self, z0, n, tmp):
        L = []
        for g in range(0, n, 4):
            seqs = []
            for e in range(4):
                z, t = z0 + g + e, tmp + e
                seqs.append(['v_mul_f32 v%d, v%d, v%d' % (t, z, z),
                             'v_fma_f32 v%d, v%d, v%d, v%d' % (t, t, vK, vK + 1),
                             'v_mul_f32 v%d, v%d, v%d' % (t, t, z),
                             'v_exp_f32 v%d, v%d' % (t, t),
                             'v_fma_f32 v%d, v%d, v%d, v%d' % (t, t, vIR, vIR),
                             'v_rcp_f32 v%d, v%d' % (t, t),
                             'v_mul_f32 v%d, v%d, v%d' % (z, z, t)])
            for k in range(7):
                for e in range(4):
                    L.append(seqs[e][k])
        return L

    def gelu_pk(self, z0, n, tmp):
        L = []
        for g in range(0, n, 8):
            P = [(z0 + g + 2 * e, tmp + 2 * e) for e in range(4)]
            L += ['v_pk_mul_f32 %s, %s, %s' % (v2(t), v2(z), v2(z)) for z, t in P]
            L += ['v_pk_fma_f32 %s, %s, %s, %s op_sel:[0,0,1] op_sel_hi:[1,0,1]' % (v2(t), v2(t), v2(vK), v2(vK)) for z, t in P]
            L += ['v_pk_mul_f32 %s, %s, %s' % (v2(t), v2(t), v2(z)) for z, t in P]
            L += ['v_exp_f32 v%d, v%d' % (tmp + e, tmp + e) for e in range(8)]
            L += ['v_pk_fma_f32 %s, %s, %s, %s' % (v2(t), v2(t), v2(vIR), v2(vIR)) for z, t in P]
            L += ['v_rcp_f32 v%d, v%d' % (tmp + e, tmp + e) for e in range(8)]
            L += ['v_pk_mul_f32 %s, %s, %s' % (v2(z), v2(z), v2(t)) for z, t in P]
        return L

    def cost(self, x):
        return 8 if x.startswith(TRANS) else 4

    def put(self, x):
        if isinstance(x, tuple):
            if x[0] == 'ST':
                self.st(x[1], sMH)
                return 16
            self.l1only(x[1], x[0] == 'L1S')
            return 16 if x[0] == 'L1S' else 8
        if isinstance(x, list):
            self.emit(x)
            return 4 * len(x) + 4
        self.a.i(x)
        return self.cost(x)

    def rs_send(self, j):
        b = vACC + 16 * j
        L = ['v_xor_b32 v%d, %d, v%d' % (vT + j, 2048 * j, vRB)]
        for q in range(2):
            L += ['v_cvt_pk_bf16_f32 v%d, v%d, v%d' % (b + p, b + 2 * p, b + 2 * p + 1) for p in range(4 * q, 4 * q + 4)]
        for q in range(2):
            L.append('ds_write_b128 v%d, %s offset:%d' % (vT + j, v4(b + 4 * q), 8192 * (j - 1) + 1024 * q))
        return L

    def paced(self, L, bg, every=12):
        for n, x in enumerate(L):
            self.put(x)
            if bg and n % every == every - 1:
                self.put(bg.pop(0))

    def ksplit(self, nk, wreg, acc0, LB1, LB0, breg, fill1=(), mid=None, first0=None, bg=None, bgfree=None, LAG=3, ahead=6, hook=None):
        a = self.a
        loads = list(LB1) + list(LB0)
        bg = bg if bg is not None else []
        nbg = [0]
        for _ in range(ahead):
            self.emit(loads.pop(0))

        def mf(w, b, ks):
            acc = vACC + 16 * (2 * w + b) if (w or b) else acc0
            a.i('v_mfma_f32_32x32x16_bf16 %s, %s, %s, %s' % (
                v16(acc), wreg(ks, w), v4(breg(b, ks)), v16(acc) if (ks or not (w or b)) else '0'))

        def gap(filler, ld, done):
            bud = 24
            if ld:
                if loads:
                    self.emit(loads.pop(0))
                    bud -= 8
                elif bg and (bgfree is None or bgfree(nbg[0]) <= done):
                    bud -= self.put(bg.pop(0))
                    nbg[0] += 1
            while filler and bud > 0:
                bud -= self.put(filler.pop(0))

        filler = list(fill1)
        for ks in range(nk):
            mf(1, 1, ks)
            gap(filler, True, 0)
            mf(0, 1, ks)
            gap(filler, False, 0)
        while filler:
            self.put(filler.pop(0))
        if mid:
            mid()
        if first0:
            a.i(first0)
        filler = []
        for ks in range(nk + LAG):
            if ks == 2:
                filler = self.rs_send(3) + self.rs_send(1)
            if ks == nk + 1:
                filler += self.rs_send(2)
            if hook:
                hook(ks)
            if ks < nk:
                mf(1, 0, ks)
                gap(filler, True, max(0, ks - LAG))
            if ks >= LAG:
                mf(0, 0, ks - LAG)
                gap(filler, ks >= nk, ks - LAG + 1)
        self.paced(filler, bg, 5)
        self.stamp('mfma')
        a.i('s_waitcnt lgkmcnt(0)')
        a.i('s_barrier')
        for j in (1, 3, 2):
            for q in range(2):
                a.i('ds_read_b128 %s, v%d offset:%d' % (v4(vACC + 16 * j + 4 * q), vRB, 8192 * (j - 1) + 1024 * q))
        if bg:
            self.put(bg.pop(0))
        L = []
        for j in (1, 3, 2):
            for p in range(8):
                L.append('v_dot2c_f32_bf16 v%d, s%d, v%d' % (acc0 + 2 * p, sSelLo, vACC + 16 * j + p))
                L.append('v_dot2c_f32_bf16 v%d, s%d, v%d' % (acc0 + 2 * p + 1, sSelHi, vACC + 16 * j + p))
        self.paced(L, bg)
        self.stamp('rs')

    def small_w_loads(self, delta):
        L = []
        pre = ['s_add_u32 s%d, s%d, 0x%x' % (sT + 10, sW1a, delta), 's_add_u32 s%d, s%d, 0x%x' % (sT + 11, sW1b, delta)]
        L0 = self.frag_loads(lambda j: vWS + 8 * j, 'v', sT + 10, 8, sT + 12)
        L1 = self.frag_loads(lambda j: vWS + 8 * j + 4, 'v', sT + 11, 8, sT + 13)
        for j in range(8):
            L.append((pre if j == 0 else []) + L0[j])
            L.append(L1[j])
        return L

    def w4_loads(self):
        L0 = self.frag_loads(lambda j: 8 * j, 'a', sW4a, 28, sT + 15)
        L1 = self.frag_loads(lambda j: 8 * j + 4, 'a', sW4b, 28, sT + 16)
        L = []
        for j in range(28):
            L.append(L0[j])
            L.append(L1[j])
        return L

    def spub(self, lay):
        a = self.a
        self.stats_part(vX, vT + 2)
        a.i('v_max_u32 v%d, 1, v%d' % (vT + 2, vT + 2))
        a.i('s_add_u32 s%d, s%d, 0x%x' % (sT + 1, sOwnST, O_SG - O_ST + 32768 * lay))
        self.st(['buffer_store_dword v%d, v%d, %s, s%d offen' % (vT + 2, vL16, WS, sT + 1)])
        a.i('s_add_u32 s%d, s%d, 0x%x' % (sT, sSTld, O_SG - O_ST + 32768 * lay))
        self.stamp('spub')

    def prologue(self):
        a = self.a
        sG, sR, sX = sP, sP + 1, sP + 2
        p0, p1, p2, p3, p4, p5 = range(sP + 3, sP + 9)
        uDst, uTS, uCS, sYo, sKVo = 3, 4, 5, 6, 7
        sDv, sW3o, sM0 = 95, 96, 97
        vTid = 15
        a.i('s_cmp_ge_u32 s2, 256')
        a.i('s_cbranch_scc1 L_end')
        if STAMP:
            a.i('s_mov_b32 s98, 0\nv_mov_b32 v31, 0')
        self.stamp('r', True)
        self.stamp('t0')
        for r, k in ((rK, 'k'), (rV, 'v'), (rWS, 'ws'), (rSK, 'sk'), (rSSM, 'ssm_k'), (rW3, 'w3'), (rQ, 'q'),
                     (rOUT, 'out'), (sDp, 'ssm_D')):
            a.i('s_load_dwordx2 s[%d:%d], s[0:1], %d' % (r, r + 1, KA[k]))
        a.i('s_load_dwordx8 s[%d:%d], s[0:1], %d' % (sKW, sKW + 7, KA['w1']))
        a.i('s_and_b32 s%d, s2, 7\ns_lshr_b32 s%d, s2, 3' % (sG, sR))
        vT16 = 64
        if OPT['cpf']:
            a.i('s_getpc_b64 s[96:97]')
            a.raw('L_pc:')
            a.i('s_lshl_b32 s%d, s%d, 10' % (p0, sR))
            a.i('v_lshl_add_u32 v65, v0, 2, s%d' % p0)
            a.i('v_min_u32 v65, L_codeend-L_pc-4, v65')
            a.i('global_load_dword v63, v65, s[96:97]')
        a.i('s_getreg_b32 s%d, hwreg(HW_REG_XCC_ID, 0, 4)' % sX)
        a.i('s_lshl_b32 s%d, s%d, 21' % (sGB, sG))
        a.i('v_mov_b32 v%d, v0' % vTid)
        a.i('v_lshrrev_b32 v16, 6, v0')
        a.i('v_and_b32 v0, 63, v0')
        a.i('v_readfirstlane_b32 s%d, v16' % sW)
        a.i('v_lshlrev_b32 v%d, 4, v0' % vL16)
        for r, n in ((rWS, WS_BYTES), (rK, S * D * 2), (rV, S * D * 2), (rSK, D * 8), (rSSM, D * S * 2),
                     (rQ, S * D * 2), (rOUT, S * D * 2), (rW3, D * F * 2)):
            self.srd(r, n)
        a.i('v_lshlrev_b32 v%d, 4, v%d' % (vT16, vTid))
        a.i('v_lshrrev_b32 v65, 3, v%d' % vTid)
        a.i('v_and_b32 v66, 7, v%d' % vTid)
        a.i('s_lshl_b32 s%d, s%d, 3' % (p5, sR))
        a.i('v_add_u32 v66, s%d, v66' % p5)
        a.i('s_lshl_b32 s%d, s%d, 5' % (p5, sG))
        a.i('v_add_u32 v67, s%d, v65' % p5)
        a.i('v_lshlrev_b32 v72, 13, v66')
        a.i('v_lshl_add_u32 v72, v67, 2, v72')
        a.i('v_add_u32 v73, 4096, v72')
        a.i('v_subrev_u32 v74, 3072, v72')
        a.i('v_lshlrev_b32 v75, 4, v67')
        a.i('v_subrev_u32 v76, 4, v%d' % vT16)
        a.i('v_mov_b32 v120, 0\nv_mov_b32 v121, 0\nv_mov_b32 v122, 0\nv_mov_b32 v123, 0')
        a.i('s_add_u32 s%d, s%d, s%d\ns_lshl_b32 s%d, s%d, 13' % (p5, p5, sR, p2, p5))
        a.i('s_lshl_b32 s%d, s%d, 2\ns_mov_b32 s%d, 0x%x' % (p3, p5, p4, EPO))
        a.i('s_lshl_b32 s%d, s%d, 12\ns_add_u32 s%d, s%d, s%d\ns_add_u32 s%d, s%d, 0x%x' % (p1, sR, p1, p1, sGB, p1, p1, O_Z))
        uSrc, uId, uKp, uCb, uOff = sA3, sST3, sH2o, sH2o3, sBx0
        a.i('s_lshl_b32 s%d, s2, 1\ns_add_u32 s%d, s%d, s%d\ns_sub_u32 s%d, s%d, 1' % (uId, uId, uId, sW, uId, uId))
        a.i('s_cmp_lt_u32 s%d, 448\ns_cselect_b32 s%d, 0, 0x%x' % (uId, uOff, OOB))
        a.i('s_cmp_eq_u32 s%d, 3\ns_cselect_b32 s%d, 0x%x, s%d' % (sW, uOff, OOB, uOff))
        a.i('s_and_b32 s%d, s2, 127\ns_lshr_b32 s%d, s2, 7\ns_lshl_b32 s%d, s%d, 19\ns_add_u32 s%d, s%d, 0x%x' % (
            p0, uDst, uDst, uDst, uDst, uDst, WF1))
        a.i('s_mov_b32 s%d, 0x20000' % (rWSRC + 3))
        a.i('s_cmp_eq_u32 s%d, 0' % sW)
        a.i('s_cselect_b32 s%d, s%d, s%d\ns_cselect_b32 s%d, 0, s%d\ns_cselect_b32 s%d, s%d, 0x%x' % (
            uId, p0, uId, uOff, uOff, uDst, uDst, WF4))
        a.i('s_mov_b32 s%d, %d\ns_cmov_b32 s%d, 32768\ns_mov_b32 s%d, 0x%x\ns_cmov_b32 s%d, 0x%x' % (
            uTS, 112 * 1024, uTS, rWSRC + 2, D * F * 2, rWSRC + 2, D * D * 2))
        a.i('s_lshr_b32 s%d, s%d, 3\ns_and_b32 s%d, s%d, 7' % (uKp, uId, uCb, uId))
        a.i('s_lshl_b32 s%d, s%d, 15\ns_lshl_b32 s%d, s%d, 7\ns_add_u32 s%d, s%d, s%d' % (uSrc, uKp, p0, uCb, uSrc, uSrc, p0))
        a.i('s_mul_i32 s%d, s%d, s%d\ns_lshl_b32 s%d, s%d, 1\ns_add_u32 s%d, s%d, s%d' % (p0, uCb, uTS, p0, p0, uDst, uDst, p0))
        a.i('s_lshl_b32 s%d, s%d, 11\ns_add_u32 s%d, s%d, s%d\ns_add_u32 s%d, s%d, s%d' % (p0, uKp, uDst, uDst, p0, uDst, uDst, uOff))
        a.i('s_lshl_b32 s%d, s%d, 12\ns_lshl_b32 s%d, s%d, 7\ns_add_u32 s%d, s%d, s%d\ns_add_u32 s%d, s%d, 0x%x' % (
            uCS, uCb, p0, uKp, uCS, uCS, p0, uCS, uCS, CSP))
        a.i('s_lshl_b32 s%d, s%d, 7\ns_or_b32 s%d, s%d, s2\ns_cmp_lt_u32 s%d, 128\ns_cselect_b32 s%d, s%d, 0x%x' % (
            p0, sW, p0, p0, p0, uCS, uCS, OOB))
        vW3 = 25
        a.i('v_bfe_u32 v77, v0, 2, 3')
        a.i('v_lshrrev_b32 v78, 5, v0\nv_and_b32 v79, 48, v%d\nv_lshl_add_u32 v78, v78, 6, v79' % vL16)
        a.i('v_mul_u32_u24 v79, %d, v77' % (F * 2))
        a.i('v_lshlrev_b32 v77, 10, v77\nv_add3_u32 v77, v77, v78, s%d' % uOff)
        a.i('s_bfe_u32 s%d, s%d, 0x20002\ns_mul_i32 s%d, s%d, 7\ns_and_b32 s%d, s%d, 3\ns_lshl_b32 s%d, s%d, 1\ns_lshr_b32 s%d, s%d, 1' % (
            sW3o, sR, sW3o, sW3o, p0, sR, p0, p0, sM0, sW))
        a.i('s_add_u32 s%d, s%d, s%d\ns_add_u32 s%d, s%d, s%d\ns_lshl_b32 s%d, s%d, 7' % (p0, p0, sM0, sW3o, sW3o, p0, sW3o, sW3o))
        a.i('s_cmp_eq_u32 s%d, 7\ns_cselect_b32 s%d, 0x%x, 0' % (p0, p0, OOB))
        a.i('v_add3_u32 v%d, v78, v79, s%d' % (vW3, p0))
        a.i('s_and_b32 s%d, s%d, 1\ns_mul_i32 s%d, s%d, %d\ns_add_u32 s%d, s%d, s%d' % (p0, sW, p0, p0, 256 * F * 2, sW3o, sW3o, p0))
        a.i('s_lshl_b32 s%d, s%d, 15' % (sM0, sW))
        a.i('s_waitcnt lgkmcnt(0)')
        self.stamp('karg')
        a.i('s_load_dword s%d, s[%d:%d], s%d' % (sTag, rWS, rWS + 1, p4))
        a.i('s_load_dword s%d, s[%d:%d], s%d' % (sDv, sDp, sDp + 1, p3))
        KR, VR, SKR = 80, 92, 100
        for e in range(3):
            a.i('buffer_load_dword v%d, v74, s[%d:%d], 0 offen offset:%d' % (KR + e, rK, rK + 3, e * 1024))
        for e in range(8):
            a.i('buffer_load_dword v%d, v%d, s[%d:%d], 0 offen offset:%d' % (KR + 3 + e, 72 + e // 4, rK, rK + 3, (e % 4) * 1024))
        for e in range(8):
            a.i('buffer_load_dword v%d, v%d, s[%d:%d], 0 offen offset:%d' % (VR + e, 72 + e // 4, rV, rV + 3, (e % 4) * 1024))
        a.i('buffer_store_dwordx4 v[120:123], v%d, %s, s%d offen sc1' % (vT16, WS, p1))
        a.i('buffer_load_dwordx4 %s, v75, s[%d:%d], 0 offen' % (v4(SKR), rSK, rSK + 3))
        self.stamp('ikv')
        a.i('s_cmp_lt_u32 s2, 128\ns_cselect_b64 s[%d:%d], s[%d:%d], s[%d:%d]' % (rWSRC, rWSRC + 1, sKW, sKW + 1, sKW + 2, sKW + 3))
        a.i('s_cmp_eq_u32 s%d, 0\ns_cselect_b64 s[%d:%d], s[%d:%d], s[%d:%d]' % (sW, rWSRC, rWSRC + 1, rWSRC, rWSRC + 1, sKW + 6, sKW + 7))
        a.i('s_mov_b32 s%d, s%d\ns_mov_b32 s%d, s%d' % (rK, uSrc, rK + 1, p2))
        uSrc, sSS = rK, rK + 1
        w3 = []
        for j in range(32):
            g = []
            if j % 4 == 0:
                g.append('s_add_u32 m0, s%d, %d' % (sM0, 1024 * j))
            if j:
                g.append('s_add_u32 s%d, s%d, %d' % (sW3o, sW3o, 8 * F * 2 - 1024 + (4096 if j % 4 == 0 else 0)))
            g.append('buffer_load_dwordx4 v%d, s[%d:%d], s%d offen offset:%d lds' % (vW3, rW3, rW3 + 3, sW3o, 1024 * (j % 4)))
            w3.append(g)
        a.i('s_mov_b32 s%d, 0\ns_mov_b32 s%d, 400000\ns_mov_b32 s%d, 0\ns_mov_b32 s%d, 1' % (sPH, sTO, sLay, sMH))
        a.i('s_mov_b32 s%d, 0x3f80\ns_mov_b32 s%d, 0x3f800000' % (sSelLo, sSelHi))
        vLW = 118
        a.i('v_add_u32 v%d, %d, v%d' % (vLW, L_RS, vT16))
        a.i('v_cmp_gt_u32 vcc, 32, v%d' % vTid)
        a.i('s_and_saveexec_b64 s[%d:%d], vcc' % (sHM, sHM + 1))
        a.i('ds_write_b128 v%d, v[120:123] offset:%d' % (vLW, CV_KVR + 4096))
        a.i('ds_write_b128 v%d, v[120:123] offset:%d' % (vLW, CV_KVR + CV_KVS + 4096))
        a.i('s_mov_b64 exec, -1')
        a.i('v_cmp_gt_u32 vcc, 2, v%d' % vTid)
        a.i('s_and_saveexec_b64 s[%d:%d], vcc' % (sHM, sHM + 1))
        for c in range(2):
            a.i('ds_write_b128 v%d, v[120:123] offset:%d' % (vLW, CV_E + c * CV_CHS))
            a.i('ds_write_b128 v%d, v[120:123] offset:%d' % (vLW, CV_E + c * CV_CHS + CV_OOFF))
        a.i('s_mov_b64 exec, -1')
        setup = self.main_setup(sG, sR)
        self.emit(setup)
        CA, CB, CD = 16, 17, 26
        vI, vQ = 114, 115
        a.i('v_and_b32 v%d, 15, v0\nv_lshrrev_b32 v%d, 4, v0' % (vI, vQ))
        sCh, sHalf = p1, p3
        a.i('s_and_b32 s%d, s%d, 1\ns_lshr_b32 s%d, s%d, 1' % (sCh, sW, sHalf, sW))
        a.i('s_mul_i32 s%d, s%d, %d\ns_lshl_b32 s%d, s%d, 8\ns_add_u32 s%d, s%d, s%d\ns_add_u32 s%d, s%d, %d' % (
            p4, sCh, CV_KVS, p5, sHalf, p4, p4, p5, p4, p4, L_RS + CV_KVR + 480))
        a.i('v_lshlrev_b32 v116, 5, v%d' % vI)
        a.i('v_sub_u32 v%d, s%d, v116' % (CA, p4))
        a.i('v_lshl_add_u32 v%d, v%d, 4, v%d' % (CA, vQ, CA))
        a.i('s_mul_i32 s%d, s%d, %d\ns_add_u32 s%d, s%d, s%d\ns_add_u32 s%d, s%d, %d' % (
            p4, sCh, CV_CHS, p4, p4, p5, p4, p4, L_RS + CV_E + CV_OOFF))
        a.i('v_add_u32 v116, 2, v%d\nv_lshrrev_b32 v116, 1, v116\nv_lshlrev_b32 v116, 2, v116' % vI)
        a.i('v_lshl_add_u32 v116, v%d, 4, v116' % vQ)
        a.i('v_add_u32 v116, s%d, v116' % p4)
        a.i('v_and_b32 v117, 1, v%d' % vI)
        a.i('v_mul_u32_u24 v117, %d, v117' % CV_OOFF)
        a.i('v_sub_u32 v%d, v116, v117' % CB)
        for b in range(1, 8):
            a.i('v_add_u32 v%d, %d, v%d' % (CB + b, 512 * b, CB))
        a.i('v_sub_u32 v66, 255, v66\nv_lshlrev_b32 v66, 4, v66')
        a.i('v_mul_u32_u24 v65, 12288, v65\nv_add_u32 v66, v65, v66')
        a.i('s_mul_i32 s%d, s%d, 12288\ns_add_u32 s%d, s%d, s%d\ns_add_u32 s%d, s%d, 0x%x' % (sKVo, sR, sKVo, sKVo, sGB, sKVo, sKVo, O_KVT))
        vTR = 119
        a.i('v_lshrrev_b32 v116, 5, v0\nv_lshlrev_b32 v116, 8, v116')
        a.i('v_bfe_u32 v117, v0, 2, 2\nv_lshl_add_u32 v116, v117, 6, v116')
        a.i('v_bfe_u32 v117, v0, 4, 1\nv_lshl_add_u32 v116, v117, 5, v116')
        a.i('v_and_b32 v117, 3, v0\nv_lshl_add_u32 v116, v117, 3, v116')
        a.i('v_add_u32 v%d, s%d, v116' % (vTR, sM0))
        a.i('s_lshl_b32 s%d, s%d, 22\ns_bfe_u32 s%d, s%d, 0x10003\ns_lshl_b32 s%d, s%d, 18\ns_add_u32 s%d, s%d, s%d' % (
            sYo, sW, p4, sR, p4, p4, sYo, sYo, p4))
        a.i('s_lshl_b32 s%d, s%d, 12\ns_add_u32 s%d, s%d, s%d\ns_lshr_b32 s%d, s%d, 4\ns_lshl_b32 s%d, s%d, 11\ns_add_u32 s%d, s%d, s%d' % (
            p4, sG, sYo, sYo, p4, p4, sR, p4, p4, sYo, sYo, p4))
        a.i('s_and_b32 s%d, s%d, 7\ns_lshl_b32 s%d, s%d, 8\ns_add_u32 s%d, s%d, s%d' % (p5, sR, p4, p5, sYo, sYo, p4))
        vRF = 30
        a.i('v_lshl_add_u32 v116, v%d, 3, s%d' % (vI, p5))
        a.i('v_and_b32 v117, 31, v0\nv_lshl_add_u32 v117, v117, 3, s%d' % sG)
        a.i('v_cmp_gt_u32 vcc, 32, v0')
        a.i('v_cndmask_b32 v116, v117, v116, vcc')
        a.i('v_lshlrev_b32 v%d, 7, v116' % vRF)
        a.i('v_mov_b32 v124, 0x3f803f80\nv_mov_b32 v125, v124\nv_mov_b32 v126, v124\nv_mov_b32 v127, v124')
        a.i('s_waitcnt lgkmcnt(0)')
        a.i('s_and_b32 s%d, s%d, -16\ns_add_u32 s%d, s%d, 0x%x\ns_or_b32 s%d, s%d, s%d' % (sTag, sTag, sTag, sTag, TAGC, sX, sX, sTag))
        a.i('s_lshl_b32 s%d, s%d, 4' % (p4, sCh))
        a.i('s_lshr_b32 s%d, s%d, s%d\ns_and_b32 s%d, s%d, 0xffff' % (sDv, sDv, p4, sDv, sDv))
        a.i('s_cmp_eq_u32 s%d, 0\ns_cselect_b32 s%d, s%d, 0' % (sHalf, sDv, sDv))
        a.i('v_lshl_add_u32 v116, v%d, 3, v%d' % (vQ, vI))
        a.i('v_sub_u32 v116, 15, v116')
        a.i('v_and_b32 v117, 1, v116\nv_lshlrev_b32 v117, 4, v117')
        a.i('v_lshlrev_b32 v117, v117, s%d' % sDv)
        a.i('v_ashrrev_i32 v116, 1, v116')
        for p in range(4):
            a.i('v_cmp_eq_u32 vcc, %d, v116' % p)
            a.i('v_cndmask_b32 v%d, 0, v117, vcc' % (CD + p))
        TP, K0, K1, KV, PL = 128, 136, 148, 160, 224
        for r in (3, 7, 10, 11):
            a.i('v_mov_b32 v%d, s%d' % (PL + r, sTag))
        a.i('v_mov_b32 v71, s%d' % sX)
        a.i('s_add_u32 s%d, s%d, 0x%x\ns_add_u32 s%d, s%d, 4096\ns_add_u32 s%d, s%d, 8192' % (p0, sGB, O_KVT, p2, p0, p5, p0))
        self.stamp('setup')
        STG = 28672
        a.i('s_add_u32 m0, s%d, %d' % (sM0, STG))
        for p in range(4):
            if p:
                a.i('s_add_u32 s%d, s%d, %d' % (uSrc, uSrc, 8192 - 1024))
            a.i('buffer_load_dwordx4 v77, s[%d:%d], s%d offen offset:%d lds' % (rWSRC, rWSRC + 3, uSrc, 1024 * p))
        ndma = len(a.vm)
        SS = 104
        a.i('s_add_u32 s%d, s%d, 4096' % (p3, sSS))
        a.i('buffer_load_dwordx4 %s, v%d, s[%d:%d], s%d offen' % (v4(SS), vT16, rSSM, rSSM + 3, sSS))
        a.i('buffer_load_dword v%d, v76, s[%d:%d], s%d offen' % (SS + 8, rSSM, rSSM + 3, sSS))
        a.i('buffer_load_dwordx4 %s, v%d, s[%d:%d], s%d offen' % (v4(SS + 4), vT16, rSSM, rSSM + 3, p3))
        a.i('buffer_load_dword v%d, v76, s[%d:%d], s%d offen' % (SS + 9, rSSM, rSSM + 3, p3))
        for _ in range(OPT['nA']):
            self.emit([w3.pop(0)])
        self.stamp('issue')
        for e in range(11):
            a.i('v_lshlrev_b32 v%d, 16, v%d' % (K0 + e, KR + e))
            a.i('v_and_b32 v%d, 0xffff0000, v%d' % (K1 + e, KR + e))
        for c in range(2):
            for p in range(2):
                a.i('v_lshlrev_b32 v%d, 16, v%d' % (TP + 4 * c + 2 * p, SKR + 2 * c + p))
                a.i('v_and_b32 v%d, 0xffff0000, v%d' % (TP + 1 + 4 * c + 2 * p, SKR + 2 * c + p))
        self.stamp('kvw')
        for c in range(2):
            kb, tb = (K0, K1)[c], TP + 4 * c
            for e in range(8):
                a.i('v_mul_f32 v%d, v%d, v%d' % (KV + 8 * c + e, kb + 3 + e, tb))
            for i in range(1, 4):
                for e in range(8):
                    a.i('v_fmac_f32 v%d, v%d, v%d' % (KV + 8 * c + e, kb + 3 + e - i, tb + i))
        for e in range(8):
            a.i('v_lshlrev_b32 v116, 16, v%d' % (VR + e))
            a.i('v_and_b32 v117, 0xffff0000, v%d' % (VR + e))
            a.i('v_mul_f32 v%d, v%d, v116' % (KV + e, KV + e))
            a.i('v_mul_f32 v%d, v%d, v117' % (KV + 8 + e, KV + 8 + e))
        for c in range(2):
            for p in range(4):
                a.i('v_cvt_pk_bf16_f32 v%d, v%d, v%d' % (PL + (4 * c + p if p < 3 else 8 + c), KV + 8 * c + 7 - 2 * p, KV + 8 * c + 6 - 2 * p))
        for pl, so in enumerate((p0, p2, p5)):
            a.i('buffer_store_dwordx4 %s, v66, %s, s%d offen sc1' % (v4(PL + 4 * pl), WS, so))
        self.stamp('kv')
        FR = 176
        nafter = 4 + OPT['nA'] + 3
        a.wait(vm=nafter)
        self.stamp('wdma')
        for tau in range(2):
            for ksl in range(2):
                for hf in range(2):
                    a.i('ds_read_b64_tr_b16 %s, v%d offset:%d' % (
                        v2(FR + 8 * tau + 4 * ksl + 2 * hf), vTR, STG + (2 * ksl + hf) * 1024 + tau * 512))
        a.i('s_add_u32 s%d, s%d, s%d' % (p4, uDst, uTS))
        for tau in range(2):
            for ksl in range(2):
                a.i('buffer_store_dwordx4 %s, v%d, %s, s%d offen offset:%d sc1' % (
                    v4(FR + 8 * tau + 4 * ksl), vL16, WS, p4 if tau else uDst, 1024 * ksl))
        for tau in range(2):
            acc = 192 + 16 * tau
            a.i('v_mfma_f32_32x32x16_bf16 %s, v[124:127], %s, 0' % (v16(acc), v4(FR + 8 * tau)))
            a.i('v_mfma_f32_32x32x16_bf16 %s, v[124:127], %s, %s' % (v16(acc), v4(FR + 8 * tau + 4), v16(acc)))
        for c in range(2):
            kb = SS + 4 * c
            o = 128 + 4 * c
            a.i('ds_write_b128 v%d, %s offset:%d' % (vLW, v4(kb), CV_E + c * CV_CHS + 32))
            a.i('v_alignbit_b32 v%d, v%d, v%d, 16' % (o, kb, SS + 8 + c))
            for p in range(1, 4):
                a.i('v_alignbit_b32 v%d, v%d, v%d, 16' % (o + p, kb + p, kb + p - 1))
            a.i('ds_write_b128 v%d, %s offset:%d' % (vLW, v4(o), CV_E + c * CV_CHS + CV_OOFF + 32))
        a.i('v_cmp_gt_u32 vcc, 32, v0')
        a.i('v_and_b32 v116, 31, v0\nv_lshlrev_b32 v116, 2, v116\nv_lshrrev_b32 v117, 5, v0')
        a.i('v_lshl_add_u32 v113, v117, 10, v116')
        a.i('v_lshl_add_u32 v116, v117, 11, v116')
        a.i('v_cndmask_b32 v192, v208, v192, vcc')
        a.i('buffer_store_dword v192, v116, %s, s%d offen sc1' % (WS, uCS))
        for _ in range(OPT['nB']):
            self.emit([w3.pop(0)])
        self.stamp('relay')
        a.i('s_add_u32 s%d, s%d, 4096\ns_add_u32 s%d, s%d, 8192' % (p4, sKVo, p5, sKVo))
        KL = 136
        kvl = ['buffer_load_dwordx4 %s, v%d, %s, s%d offen sc1' % (v4(KL + 4 * pl), vT16, WS, so)
               for pl, so in enumerate((sKVo, p4, p5))]
        self.emit(kvl)
        a.i('s_lshl_b32 s%d, s2, 7\ns_add_u32 s%d, s%d, 0x%x' % (p0, p0, p0, RF))
        a.i('s_waitcnt vmcnt(%d)' % (3 + OPT['nB']))
        self.stamp('rflag')
        a.alt('s_cmp_eq_u32 s%d, 0' % sW, 's_cbranch_scc1', [], [
            's_mov_b64 exec, 1',
            'buffer_store_dword v71, off, %s, s%d sc1' % (WS, p0),
            's_mov_b64 exec, -1',
            's_waitcnt vmcnt(1)',
            's_branch L_kchk'])
        a.label('L_kf', drain=False)
        a.i('s_waitcnt vmcnt(0)')
        a.label('L_kchk', drain=False)
        a.i('v_xor_b32 v116, s%d, v%d' % (sTag, KL + 3))
        a.i('v_bitop3_b32 v116, v116, v%d, s%d bitop3:0xf6' % (KL + 7, sTag))
        a.i('v_bitop3_b32 v116, v116, v%d, s%d bitop3:0xf6' % (KL + 10, sTag))
        a.i('v_cmp_ne_u32 vcc, 0, v116')
        a.alt('s_cmp_eq_u64 vcc, 0', 's_cbranch_scc0', [], kvl + [
            's_sub_u32 s%d, s%d, 1' % (sTO, sTO), 's_cbranch_scc1 L_end', 's_branch L_kf'])
        a.forget()
        self.stamp('kpoll')
        a.i('v_mov_b32 v%d, v%d\nv_mov_b32 v%d, v%d' % (KL + 3, KL + 8, KL + 7, KL + 9))
        a.i('ds_write_b128 v%d, %s offset:%d' % (vLW, v4(KL), CV_KVR))
        a.i('ds_write_b128 v%d, %s offset:%d' % (vLW, v4(KL + 4), CV_KVR + CV_KVS))
        a.i('s_mov_b32 s%d, 0x%x' % (p4, RF))
        rfl = 'buffer_load_dword v120, v%d, %s, s%d offen sc1' % (vRF, WS, p4)
        a.i('s_waitcnt lgkmcnt(0)')
        a.i('s_barrier')
        self.stamp('stage')
        self.stop(1)
        ACC = 64
        FA, FB = [0, 64], [32, 96]

        def loads(cc, buf):
            L = []
            for d in range(8):
                L.append('ds_read_b128 %s, v%d offset:%d' % (v4(FA[buf] + 4 * d, 'a'), CA, 512 * (7 - d) + 64 * cc))
                L.append('ds_read2_b32 %s, v%d offset0:%d offset1:%d' % (v2(FB[buf] + 4 * d, 'a'), CB + d, 16 * cc, 16 * cc + 1))
                L.append('ds_read2_b32 %s, v%d offset0:%d offset1:%d' % (v2(FB[buf] + 4 * d + 2, 'a'), CB + d, 16 * cc + 2, 16 * cc + 3))
            return L
        self.emit(loads(0, 0))
        vQT = 100
        t0, t1, t2 = sT, sT + 1, sT + 2
        stream = [self.out_addr(108, 109, t0, t1) + [
            'buffer_load_dwordx4 %s, v108, s[%d:%d], s%d offen' % (v4(vQT), rQ, rQ + 3, t0)],
            ['buffer_load_dwordx4 %s, v108, s[%d:%d], s%d offen offset:32' % (v4(vQT + 4), rQ, rQ + 3, t0)],
            ['v_and_b32 v110, 31, v0', 'v_lshlrev_b32 v110, 7, v110', 'v_mul_u32_u24 v109, 0x%x, v109' % (O_SG - O_ST),
             'v_add_u32 v110, v110, v109', 'buffer_load_dword v160, v110, %s, s%d offen sc1' % (WS, sSTld)],
            ['buffer_load_dword v161, v%d, %s, 0 offen sc1' % (vPC, WS)],
            ['buffer_load_dword v162, v%d, %s, 0 offen sc1' % (vP4, WS)]]
        if OPT['tlb']:
            stream.append(['v_and_b32 v110, 7, v0', 'v_lshlrev_b32 v110, 21, v110', 'v_add_u32 v110, 0x%x, v110' % (O_FL + 0x4000),
                           'buffer_load_dword v163, v110, %s, 0 offen sc1' % WS])
            stream.append(['buffer_load_dword v164, v108, s[%d:%d], s%d offen' % (rOUT, rOUT + 3, t0)])
        stream += w3
        CS = 128
        post = []
        pre = ['s_lshl_b32 s%d, s%d, 11' % (t2, self.sNt), 's_add_u32 s%d, s%d, 0x%x' % (t2, t2, CSP)]
        for i in range(0, 8, 2):
            post.append(pre + ['buffer_load_dword v%d, v113, %s, s%d offen offset:%d sc1' % (CS + i + q, WS, t2, 128 * (i + q))
                               for q in range(2)])
            pre = []
        post += self.small_w_loads(0)
        pre = ['s_lshr_b32 s%d, s2, 3' % t1, 's_lshl_b32 s%d, s%d, 14' % (t1, t1), 's_add_u32 s%d, s%d, 0x%x' % (t1, t1, WF2),
               'v_lshlrev_b32 v110, 6, v%d' % vTid]
        post.append(pre + ['buffer_load_dword v165, v110, %s, s%d offen sc1' % (WS, t1)])
        for cc in range(4):
            buf = cc & 1
            nxt = loads(cc + 1, buf ^ 1) if cc < 3 else []
            mf = []
            if cc == 0:
                for m in range(8):
                    mf.append('v_mfma_f32_16x16x32_bf16 %s, %s, %s, 0' % (v4(ACC + 4 * m), v4(CD), v4(FA[buf] + 4 * m, 'a')))
            pairs = sorted([(m, b) for m in range(8) for b in range(m + 1)], key=lambda t: (max(t[0] - t[1], t[1]), t[1]))
            for m, b in pairs:
                mf.append('v_mfma_f32_16x16x32_bf16 %s, %s, %s, %s' % (
                    v4(ACC + 4 * m), v4(FB[buf] + 4 * b, 'a'), v4(FA[buf] + 4 * (m - b), 'a'), v4(ACC + 4 * m)))
            if cc == OPT['rfcc'] - 1:
                a.i(rfl)
            if cc == OPT['rfcc']:
                a.i('v_xor_b32 v120, s%d, v120' % sX)
                a.label('L_rf', drain=False)
                a.i('v_cmp_lt_u32 vcc, 15, v120')
                a.alt('s_cmp_eq_u64 vcc, 0', 's_cbranch_scc0', [], [
                    rfl, 's_sub_u32 s%d, s%d, 1' % (sTO, sTO), 's_cbranch_scc1 L_end', 's_waitcnt vmcnt(0)',
                    'v_xor_b32 v120, s%d, v120' % sX, 's_branch L_rf'])
                a.i('v_cmp_ne_u32 vcc, 0, v120')
                a.i('s_cmp_lg_u32 vcc_hi, 0')
                a.i('s_cselect_b32 s%d, 1, 0' % sMode)
                if FORCE_SLOW:
                    a.i('s_mov_b32 s%d, 1' % sMode)
                self.stamp('rf')
                stream = post + stream
            k = 0
            for n, x in enumerate(mf):
                a.i(x)
                if n >= 8 and k < len(nxt):
                    a.i(nxt[k])
                    k += 1
                if stream and n % OPT['cstep'] == OPT['cstep'] - 1:
                    self.emit([stream.pop(0)])
            while k < len(nxt):
                a.i(nxt[k])
                k += 1
        self.stamp('conv')
        a.i('s_lshl_b32 s%d, s%d, 13\ns_add_u32 s%d, s%d, %d' % (p4, sW, p4, p4, L_RS))
        a.i('v_bfe_u32 v116, v0, 1, 2\nv_xor_b32 v116, v116, v%d' % vQ)
        a.i('v_lshlrev_b32 v117, 6, v%d\nv_lshl_add_u32 v117, v116, 4, v117' % vI)
        a.i('v_add_u32 v116, s%d, v117' % p4)
        a.i('s_barrier')
        for m in range(8):
            a.i('ds_write_b128 v116, %s offset:%d' % (v4(ACC + 4 * m), 1024 * m))
        a.i('s_lshl_b32 s%d, s%d, 11\ns_add_u32 s%d, s%d, %d' % (p4, sW, p4, p4, L_RS))
        a.i('v_lshl_add_u32 v116, v0, 3, s%d' % p4)
        a.i('v_lshlrev_b32 v112, 4, v%d\nv_xor_b32 v112, v112, v116' % vQ)
        a.i('v_lshlrev_b32 v117, 4, v%d\nv_lshl_add_u32 v117, v%d, 15, v117' % (vI, vQ))
        YS = 144
        for s in range(4):
            a.i('v_mov_b32 v%d, s%d\nv_mov_b32 v%d, s%d' % (YS + 4 * s + 1, sTag, YS + 4 * s + 3, sTag))
        a.i('s_waitcnt lgkmcnt(0)')
        a.i('s_barrier')
        for s in range(4):
            for c in range(2):
                a.i('ds_read2st64_b64 %s, v112 offset0:%d offset1:%d' % (v4(64 + 8 * s + 4 * c), 16 * c + s, 16 * (c + 2) + s))
        for s in range(4):
            b = 64 + 8 * s
            a.i('v_pk_add_f32 %s, %s, %s' % (v2(b), v2(b), v2(b + 2)))
            a.i('v_pk_add_f32 %s, %s, %s' % (v2(b + 4), v2(b + 4), v2(b + 6)))
            a.i('v_cvt_pk_bf16_f32 v%d, v%d, v%d' % (YS + 4 * s, b, b + 4))
            a.i('v_cvt_pk_bf16_f32 v%d, v%d, v%d' % (YS + 4 * s + 2, b + 1, b + 5))
            if s:
                a.i('s_add_u32 s%d, s%d, 0x%x' % (p4, sYo, (s >> 1) * GSZ + (s & 1) * 131072))
            a.i('buffer_store_dwordx4 %s, v117, %s, s%d offen sc1' % (v4(YS + 4 * s), WS, p4 if s else sYo))
        nlate = len(stream)
        self.emit(stream)
        self.stamp('ystore')
        for t in range(2):
            b = vQT + 4 * t
            a.i('v_permlane32_swap_b32 v%d, v%d' % (b, b + 2))
            a.i('v_permlane32_swap_b32 v%d, v%d' % (b + 1, b + 3))
        for p in range(8):
            a.i('v_lshlrev_b32 v%d, 16, v%d' % (vX + 2 * p, vQT + p))
            a.i('v_and_b32 v%d, 0xffff0000, v%d' % (vX + 2 * p + 1, vQT + p))
        self.spub(0)

        def hilo(G):
            a.i('v_cvt_pk_bf16_f32 v%d, v%d, v%d' % (G + 2, G, G))
            a.i('v_and_b32 v%d, 0xffff0000, v%d' % (G + 3, G + 2))
            a.i('v_sub_f32 v%d, v%d, v%d' % (G + 3, G, G + 3))
            a.i('v_cvt_pk_bf16_f32 v%d, v%d, v%d' % (G + 3, G + 3, G + 3))
        a.wait(vm=1 if nlate else 5)
        self.stamp('w3w')
        RG, NR = 136, 6

        def trr(n):
            for hf in range(2):
                a.i('ds_read_b64_tr_b16 %s, v%d offset:%d' % (v2(RG + 4 * (n % NR) + 2 * hf), vTR, 2048 * (n >> 1) + 1024 * hf + 512 * (n & 1)))
        for n in range(5):
            trr(n)
        G = CS
        a.i('v_pk_add_f32 %s, %s, %s' % (v2(G), v2(G), v2(G + 4)))
        a.i('v_pk_add_f32 %s, %s, %s' % (v2(G + 2), v2(G + 2), v2(G + 6)))
        a.i('v_pk_add_f32 %s, %s, %s' % (v2(G), v2(G), v2(G + 2)))
        a.i('v_add_f32 v%d, v%d, v%d' % (G, G, G + 1))
        hilo(G)
        a.i('v_mov_b32 v%d, v%d\nv_mov_b32 v%d, v%d' % (vCS1, G + 2, vCS1 + 1, G + 3))
        a.i('v_cmp_gt_u32 vcc, 32, v0')
        a.i('v_and_b32 v108, 31, v0\nv_lshlrev_b32 v108, 3, v108\nv_lshrrev_b32 v109, 5, v0\nv_lshl_add_u32 v108, v109, 9, v108')
        a.i('s_add_u32 s%d, s%d, 0x%x' % (t2, sOwnXA, O_HS))
        YL = 160
        yl = ['buffer_load_dwordx2 %s, v108, %s, s%d offen offset:%d sc1' % (
            v2(YL + 2 * p), WS, t2 if p >= 4 else sOwnXA, ((p >> 1) & 1) * 1024 + (p & 1) * 256) for p in range(8)]
        for n in range(32):
            acc = 64 + 16 * (n & 1)
            a.i('v_mfma_f32_32x32x16_bf16 %s, v[124:127], %s, %s' % (v16(acc), v4(RG + 4 * (n % NR)), v16(acc) if n > 1 else '0'))
            if n + 5 < 32:
                trr(n + 5)
            if OPT['ypos'] <= n < OPT['ypos'] + 8:
                a.i(yl[n - OPT['ypos']])
        a.i('v_subrev_u32 v%d, s%d, v%d' % (vTRb, sM0, vTR))
        a.i('v_cndmask_b32 v64, v80, v64, vcc')
        hilo(64)
        a.i('ds_write_b64 v116, %s offset:24576' % v2(66))
        self.stamp('w3c')
        a.label('L_yg', drain=False)
        a.i('s_waitcnt vmcnt(0)')
        a.i('v_xor_b32 v109, s%d, v%d' % (sTag, YL + 1))
        for p in range(1, 8):
            a.i('v_bitop3_b32 v109, v109, v%d, s%d bitop3:0xf6' % (YL + 2 * p + 1, sTag))
        a.i('v_cmp_ne_u32 vcc, 0, v109')
        a.alt('s_cmp_eq_u64 vcc, 0', 's_cbranch_scc0', [], yl + [
            's_sub_u32 s%d, s%d, 1' % (sTO, sTO), 's_cbranch_scc1 L_end', 's_branch L_yg'])
        for p in range(8):
            a.i('v_mov_b32 v%d, v%d' % (vY + p, YL + 2 * p))
        a.i('s_waitcnt lgkmcnt(0)')
        self.stamp('ygat')
        self.stop(2)

    def main_setup(self, sG, sR):
        L = []
        t0, t1, t2, t3, t4, t5, t6, t7 = range(sT, sT + 8)
        self.sTl, self.sNt, self.sFt = t5, t6, t7
        Tl, nt, ft = t5, t6, t7

        def e(s):
            L.extend(s.split('\n'))
        e('s_lshr_b32 s%d, s%d, 3\ns_lshl_b32 s%d, s%d, 1' % (t0, sR, t0, t0))
        e('s_and_b32 s%d, s%d, 1\ns_add_u32 s%d, s%d, s%d' % (t1, sW, Tl, t0, t1))
        e('s_and_b32 s%d, s%d, 7\ns_lshl_b32 s%d, s%d, 1\ns_lshr_b32 s%d, s%d, 1\ns_add_u32 s%d, s%d, s%d' % (
            nt, sR, nt, nt, t2, sW, nt, nt, t2))
        e('s_lshl_b32 s%d, s%d, 11\ns_add_u32 s%d, s%d, s%d' % (t2, nt, sHSo, t2, sGB))
        e('s_lshl_b32 s%d, s%d, 15\ns_add_u32 s%d, s%d, s%d' % (t3, Tl, sOwnXA, t3, sHSo))
        e('s_lshl_b32 s%d, s%d, 13\ns_add_u32 s%d, s%d, s%d\ns_add_u32 s%d, s%d, s%d' % (t4, sW, sBx0, t3, t4, sBx0, sBx0, sGB))
        e('s_xor_b32 s%d, s%d, 32768' % (sBx1, sBx0))
        e('s_lshl_b32 s%d, s%d, 12\ns_add_u32 s%d, s%d, s%d\ns_add_u32 s%d, s%d, 0x%x' % (sSTld, Tl, sSTld, sSTld, sGB, sSTld, sSTld, O_ST))
        e('s_lshr_b32 s%d, s%d, 2\ns_lshl_b32 s%d, s%d, 10\ns_add_u32 s%d, s%d, s%d' % (t3, nt, t3, t3, sOwnST, sSTld, t3))
        e('s_and_b32 s%d, s%d, 3\ns_lshl_b32 s%d, s%d, 2\ns_add_u32 s%d, s%d, s%d' % (t3, nt, t3, t3, sOwnST, sOwnST, t3))
        e('s_add_u32 s%d, s%d, 0x%x' % (sHSo, sHSo, O_HS))
        e('s_lshl_b32 s%d, s%d, 15\ns_add_u32 s%d, s%d, s%d\ns_add_u32 s%d, s%d, 0x%x' % (sW1a, nt, sW1a, sW1a, t4, sW1a, sW1a, WF1))
        e('s_xor_b32 s%d, s%d, 32768' % (sW1b, sW1a))
        e('s_mul_i32 s%d, s%d, %d' % (t4, sW, 28 * 1024))
        e('s_mul_i32 s%d, s%d, %d\ns_add_u32 s%d, s%d, s%d\ns_add_u32 s%d, s%d, 0x%x' % (sW4a, nt, 112 * 1024, sW4a, sW4a, t4, sW4a, sW4a, WF4))
        e('s_xor_b32 s%d, s%d, 1\ns_mul_i32 s%d, s%d, %d\ns_add_u32 s%d, s%d, s%d\ns_add_u32 s%d, s%d, 0x%x' % (
            t3, nt, sW4b, t3, 112 * 1024, sW4b, sW4b, t4, sW4b, sW4b, WF4))
        e('s_add_u32 s%d, s%d, s%d\ns_add_u32 s%d, s%d, 0x%x' % (t4, t4, sGB, t4, t4, O_H2))
        e('s_mul_i32 s%d, s%d, %d\ns_add_u32 s%d, s%d, s%d' % (sH2x0, Tl, 112 * 1024, sH2x0, sH2x0, t4))
        e('s_xor_b32 s%d, s%d, 1\ns_mul_i32 s%d, s%d, %d\ns_add_u32 s%d, s%d, s%d' % (t3, Tl, sH2x1, t3, 112 * 1024, sH2x1, sH2x1, t4))
        e('s_lshr_b32 s%d, s%d, 4\ns_lshl_b32 s%d, s%d, 2\ns_add_u32 s%d, s%d, s%d' % (t3, sR, t3, t3, t3, t3, sW))
        e('s_lshl_b32 s%d, s%d, 15\ns_add_u32 s%d, s%d, s%d' % (sA3, t3, sA3, sA3, sGB))
        e('s_lshl_b32 s%d, s%d, 12\ns_add_u32 s%d, s%d, s%d\ns_add_u32 s%d, s%d, 0x%x' % (sST3, t3, sST3, sST3, sGB, sST3, sST3, O_ST))
        e('s_bfe_u32 s%d, s%d, 0x20002\ns_mul_i32 s%d, s%d, 14\ns_and_b32 s%d, s%d, 3\ns_lshl_b32 s%d, s%d, 2\ns_add_u32 s%d, s%d, s%d' % (
            ft, sR, ft, ft, t4, sR, t4, t4, ft, ft, t4))
        e('s_mul_i32 s%d, s%d, %d\ns_lshl_b32 s%d, s%d, 11\ns_add_u32 s%d, s%d, s%d\ns_add_u32 s%d, s%d, s%d\ns_add_u32 s%d, s%d, 0x%x' % (
            sH2o, t3, 112 * 1024, t2, ft, sH2o, sH2o, t2, sH2o, sH2o, sGB, sH2o, sH2o, O_H2))
        e('s_add_u32 s%d, s%d, 4096\ns_cmp_lg_u32 s%d, 12\ns_cselect_b32 s%d, s%d, 0x%x' % (sH2o3, sH2o, t4, sH2o3, sH2o3, OOB))
        e('s_add_u32 s%d, s%d, 0x%x' % (t4, sGB, O_FL))
        e('s_lshl_b32 s%d, s%d, 8\ns_add_u32 s%d, s%d, s%d\ns_lshl_b32 s%d, s%d, 2\ns_add_u32 s%d, s%d, s%d' % (
            sFA, Tl, sFA, sFA, t4, t2, nt, sFA, sFA, t2))
        e('s_lshl_b32 s%d, s%d, 8\ns_add_u32 s%d, s%d, s%d' % (t3, t3, t3, t3, t4))
        e('s_and_b32 s%d, s%d, 15\ns_lshl_b32 s%d, s%d, 2\ns_add_u32 s%d, s%d, s%d\ns_add_u32 s%d, s%d, 128' % (
            t2, sR, t2, t2, sFB, t3, t2, sFB, sFB))
        x0, x1, x2 = 236, 237, 238
        e('v_and_b32 v%d, 15, v0\nv_lshlrev_b32 v%d, 2, v%d' % (x0, x0, x0))
        e('v_add_u32 v%d, s%d, v%d' % (vP3, t3, x0))
        e('s_lshl_b32 s%d, s%d, 8\ns_add_u32 s%d, s%d, s%d' % (t3, t0, t3, t3, t4))
        e('v_bfe_u32 v%d, v0, 4, 1\nv_lshl_add_u32 v%d, v%d, 8, v%d' % (x1, x0, x1, x0))
        e('v_add_u32 v%d, s%d, v%d' % (vPA, t3, x0))
        e('v_and_b32 v%d, 3, v0\nv_lshlrev_b32 v%d, 2, v%d' % (x0, x0, x0))
        e('s_lshl_b32 s%d, s%d, 4\ns_add_u32 s%d, s%d, s%d' % (t2, sW, t3, t3, t2))
        e('v_add_u32 v%d, s%d, v%d' % (x0, t3, x0))
        e('v_lshl_add_u32 v%d, v%d, 8, v%d\nv_add_u32 v%d, 128, v%d' % (vP4, x1, x0, vP4, vP4))
        e('s_mul_i32 s%d, s%d, 3\ns_sub_u32 s%d, s%d, 1\ns_add_u32 s%d, s%d, s%d' % (t2, t1, t2, t2, t4, t0, t2))
        e('s_cmp_lt_u32 s%d, 8\ns_cselect_b32 s%d, s%d, 0\ns_cselect_b32 s%d, 0, 1' % (t4, t2, t2, t4))
        e('s_lshl_b32 s%d, s%d, 8' % (t2, t2))
        e('v_add_u32 v%d, s%d, v%d' % (x0, t2, x0))
        e('v_cmp_gt_u32 vcc, 32, v0\ns_nop 1\nv_cndmask_b32 v%d, v%d, v%d, vcc' % (vPC, x0, vPA))
        e('s_lshr_b32 s%d, s%d, 1\ns_lshl_b32 s%d, s%d, 1\ns_add_u32 s%d, s%d, 1' % (t2, sW, t2, t2, t2, t2))
        e('s_brev_b32 s%d, s%d\ns_cmp_eq_u32 s%d, 0\ns_cselect_b32 s%d, s%d, s%d' % (t3, t2, t1, t2, t2, t3))
        e('s_mul_i32 s%d, s%d, s%d' % (t2, t2, t4))
        e('s_mov_b32 vcc_lo, s%d\ns_mov_b32 vcc_hi, s%d' % (t2, t2))
        e('s_lshl_b32 s%d, s%d, 1\ns_add_u32 s%d, s%d, s%d\ns_sub_u32 s%d, s%d, 1' % (t3, t1, t3, t3, sG, t3, t3))
        e('s_lshl_b32 s%d, s%d, 15\ns_sub_u32 s%d, 0x%x, s%d' % (t4, Tl, t4, O_HB - O_HS, t4))
        e('s_cmp_lt_u32 s%d, 8\ns_cselect_b32 s%d, s%d, 0\ns_cselect_b32 s%d, s%d, 0x%x' % (t3, t2, t2, t4, t4, OOB))
        e('s_mov_b32 s%d, s%d\ns_mov_b32 s%d, s%d' % (sHM, t2, sHM + 1, t2))
        e('v_and_b32 v%d, 0x210, v%d\nv_add_u32 v%d, s%d, v%d' % (x0, vL16, x0, t4, x0))
        e('v_cndmask_b32 v%d, v%d, v%d, vcc' % (vHL, vL16, x0))
        e('v_mov_b32 v%d, %d\nv_cndmask_b32 v%d, 0, v%d, vcc' % (x0, 128, vHLd, x0))
        e('s_lshr_b32 s%d, s%d, 3\ns_add_u32 s%d, s%d, 1\ns_sub_u32 s%d, 0, s%d' % (t2, nt, t2, t2, t3, t2))
        e('s_bitcmp1_b32 s%d, 2\ns_cselect_b32 s%d, s%d, s%d\ns_cselect_b32 s%d, -1, 1' % (nt, t2, t3, t2, t3))
        e('s_lshl_b32 s%d, s%d, 5\ns_add_u32 s%d, s%d, s%d' % (t4, Tl, t2, t2, t4))
        e('v_and_b32 v%d, 31, v0\nv_add_u32 v%d, s%d, v%d' % (x0, x0, t2, x0))
        e('v_and_b32 v%d, 0x200, v%d' % (x1, vL16))
        e('v_and_b32 v%d, 31, v%d\nv_lshl_add_u32 v%d, v%d, 4, v%d' % (x2, x0, x2, x2, x1))
        e('v_lshrrev_b32 v%d, 5, v%d\nv_lshl_add_u32 v%d, v%d, 15, v%d' % (vHS, x0, vHS, vHS, x2))
        e('v_and_b32 v%d, 0x210, v%d' % (x2, x2))
        e('v_mov_b32 v%d, 0x%x' % (x1, OOB))
        e('v_cmp_gt_u32 vcc, 256, v%d\ns_nop 1' % x0)
        e('v_cndmask_b32 v%d, v%d, v%d, vcc\nv_cndmask_b32 v%d, v%d, v%d, vcc' % (vHS, x1, vHS, vHB, x2, x1))
        e('s_add_u32 s%d, s%d, s%d\ns_lshl_b32 s%d, s%d, 8\ns_add_u32 s%d, s%d, s%d' % (t4, Tl, t3, t2, t3, t3, sG, t3))
        e('s_cmp_lt_u32 s%d, 8\ns_cselect_b32 s%d, s%d, 0\ns_add_u32 s%d, s%d, s%d' % (t4, t2, t2, t2, t2, sFA))
        e('v_mov_b32 v%d, s%d\nv_cmp_gt_u32 vcc, 32, v0\ns_nop 1\nv_cndmask_b32 v%d, v%d, v%d, vcc' % (x0, t2, vPA, x0, vPA))
        e('s_cmp_ge_u32 s%d, 8\ns_cselect_b32 s%d, 1, 0\ns_cmp_lt_u32 s%d, 8\ns_cselect_b32 s%d, s%d, 0' % (
            t4, sHaloP, t3, sHaloP, sHaloP))
        e('s_lshl_b32 s%d, s%d, 21\ns_lshl_b32 s%d, s%d, 11\ns_add_u32 s%d, s%d, s%d\ns_add_u32 s%d, s%d, 0x%x' % (
            sHBo, t3, t2, nt, sHBo, sHBo, t2, sHBo, sHBo, O_HB))
        e('s_lshl_b32 s%d, s%d, 11\ns_add_u32 s%d, s%d, %d\nv_add_u32 v%d, s%d, v%d' % (t2, sW, t2, t2, L_RS, vRB, t2, vL16))
        return L

    def out_addr(self, vd, vt, sd, st):
        return ['v_and_b32 v%d, 31, v0' % vd, 'v_lshlrev_b32 v%d, 10, v%d' % (vd, vd),
                'v_lshrrev_b32 v%d, 5, v0' % vt, 'v_lshl_add_u32 v%d, v%d, 4, v%d' % (vd, vt, vd),
                's_lshr_b32 s%d, s%d, 3' % (sd, sGB), 's_and_b32 s%d, s%d, 0x38000' % (st, sOwnXA),
                's_add_u32 s%d, s%d, s%d' % (sd, sd, st), 's_bfe_u32 s%d, s%d, 0x4000b' % (st, sOwnXA),
                's_lshl_b32 s%d, s%d, 6' % (st, st), 's_add_u32 s%d, s%d, s%d' % (sd, sd, st)]

    def mainloop(self):
        a = self.a
        t0, t1, t2, t3, t4 = range(sT, sT + 5)
        a.label('L_loop')
        a.forget()
        YF, G = vACC, vACC + 16
        for p in range(8):
            a.i('v_lshlrev_b32 v%d, 16, v%d' % (YF + 2 * p, vY + p))
            a.i('v_and_b32 v%d, 0xffff0000, v%d' % (YF + 2 * p + 1, vY + p))
        self.tagged_gather(self.stat_loads(G, t0), range(G, G + 16), 'sgat')
        self.emit(self.stats_fin(G))
        a.i('v_add_f32 v%d, %s, v%d' % (G + 1, f32(EPS), G + 1))
        a.i('v_rsq_f32 v%d, v%d' % (G + 2, G + 1))
        a.i('v_mul_f32 v%d, v%d, v%d' % (G + 3, G, G + 2))
        PT = vACC + 32
        for p in range(8):
            a.i('v_pk_fma_f32 %s, %s, %s, %s op_sel:[0,0,1] op_sel_hi:[1,0,1]' % (v2(PT + 2 * p), v2(vX + 2 * p), v2(G + 2), v2(G + 2)))
        for p in range(8):
            a.i('v_pk_fma_f32 %s, %s, %s, %s' % (v2(vX + 2 * p), v2(PT + 2 * p), v2(YF + 2 * p), v2(vX + 2 * p)))
        PK = vACC + 48

        def publish_tile(X):
            self.pack(PK, X, 8)
            self.st(['buffer_store_dwordx4 %s, v%d, %s, s%d offen offset:%d' % (v4(PK + 4 * q), vL16, WS, sOwnXA, 1024 * q)
                     for q in range(2)])
            self.stats_part(X, vT + 2)
            self.st(['buffer_store_dword v%d, v%d, %s, s%d offen' % (vT + 2, vL16, WS, sOwnST)])
        publish_tile(vX)
        self.flag(sFA)
        self.stop(3)

        self.poll(vPA)
        G = vACC
        self.emit(self.stat_loads(G, sSTld))
        L1 = self.frag_loads(lambda j: vB + 8 * j + 4, 'v', sBx1, 8, t3)
        L0 = self.frag_loads(lambda j: vB + 8 * j, 'v', sBx0, 8, t4)
        stat = self.stats_fin(G, pk=False) + self.mu_frag(G) + [
            'v_add_f32 v%d, %s, v%d' % (G + 2, f32(EPS), G + 1),
            'v_rsq_f32 v%d, v%d' % (vRN, G + 2),
            'v_mov_b32 v%d, %s' % (G + 4, f32(EPS * EPS)),
            'v_fmac_f32 v%d, %s, v%d' % (G + 4, f32(1.0 + EPS), G + 1),
            'v_mul_f32 v%d, v%d, v%d' % (vRN + 1, G, vRN)] + self.gelu_consts(G + 4)
        wsr = lambda ks, w: v4(vWS + 8 * ks + 4 * w)
        bsr = lambda b, ks: vB + 8 * ks + 4 * b
        w4 = self.w4_loads()

        def take4(n):
            L = [('L1S', w4[i] + w4[i + 1]) for i in range(0, n, 2)]
            del w4[:n]
            return L
        n41 = OPT['w4g1'] // 2
        bg = take4(OPT['w4g1']) + self.small_w_loads(WF2 - WF1)
        self.ksplit(8, wsr, vACC, L1, L0, bsr, fill1=stat,
                    first0='v_mfma_f32_32x32x8_bf16 %s, %s, %s, 0' % (v16(vACC), v2(vCS1), v2(vMU)),
                    bg=bg, bgfree=lambda i: 0 if i < n41 else (i - n41) // 2 + 1, ahead=OPT['ah1'])
        self.paced(self.gelu_pk(vACC, 16, vACC + 16), bg, 8)
        self.emit(bg)
        self.pack(PK, vACC, 8)
        self.st(['buffer_store_dwordx4 %s, v%d, %s, s%d offen offset:%d' % (v4(PK + 4 * q), vHS, WS, sHSo, 1024 * q)
                 for q in range(2)])
        a.alt('s_cmp_lg_u32 s%d, 0' % sHaloP, 's_cbranch_scc1', [],
              ['v_max_u32 v%d, 1, v%d' % (PK + 8 + p, PK + p) for p in range(8)] +
              ['buffer_store_dwordx4 %s, v%d, %s, s%d offen offset:%d sc1' % (v4(PK + 8 + 4 * q), vHB, WS, sHBo, 1024 * q)
               for q in range(2)])
        for p in range(8):
            a.i('v_pk_fma_f32 %s, %s, %s, %s op_sel:[0,0,1] op_sel_hi:[1,0,1]' % (v2(vACC + 2 * p), v2(vX + 2 * p), v2(vRN), v2(vRN)))
        self.flag(sFA)
        self.stop(4)

        a.i('s_add_u32 s%d, s%d, 0x%x\ns_add_u32 s%d, s%d, 0x%x' % (t1, sBx0, O_HS, t2, sBx1, O_HS))
        self.poll(vPC)
        L1 = self.frag_loads(lambda j: vB + 8 * j + 4, 'v', t2, 8, t3)
        L0 = self.frag_loads(lambda j: vB + 8 * j, 'v', t1, 8, t4, vHL)

        def halo():
            lh, lr = a.newlabel('HALO'), a.newlabel('HRET')
            a.i('s_cmp_lg_u32 s%d, 0' % sHM)
            a.rawbr('s_cbranch_scc1 %s' % lh)
            sv = (list(a.hist), list(a.vm), list(a.lg), a.out)
            a.out = [lh + ':']
            self.emit(self.frag_loads(lambda j: vB + 8 * j, 'v', t1, 8, t0, vHL))
            self.tick()
            a.i('s_waitcnt vmcnt(0)')
            self.minchain(vT + 1, [vB + 8 * j + q for j in range(8) for q in range(4)])
            a.i('v_cmp_eq_u32 vcc, 0, v%d' % (vT + 1))
            a.i('s_and_b64 vcc, vcc, s[%d:%d]' % (sHM, sHM + 1))
            a.i('s_cbranch_scc1 %s' % lh)
            a.i('s_branch %s' % lr)
            a.ool.extend(a.out)
            a.hist, a.vm, a.lg, a.out = sv
            a.out.append(lr + ':')
        bg = take4(OPT['w4g2'])
        self.ksplit(8, wsr, vACC, L1, L0, bsr, mid=halo, bg=bg, ahead=OPT['ah2'])
        assert not bg
        publish_tile(vACC)
        for p in range(8):
            a.i('v_pk_add_f32 %s, %s, %s' % (v2(vX + 2 * p), v2(vX + 2 * p), v2(vACC + 2 * p)))
        self.flag(sFA)
        self.stop(5)

        rd = lambda n: '\n'.join('ds_read_b64_tr_b16 %s, v%d offset:%d' % (
            v2(aRING + 4 * (n % NRING) + 2 * hf, 'a'), vTRb if seq[n][0] < 2 else vT + 13,
            2048 * seq[n][1] + 1024 * hf + 512 * (seq[n][0] & 1)) for hf in range(2))
        seq = []
        for ks in range(32):
            seq += [(0, ks), (1, ks)]
        seq += [(2, ks) for ks in range(32)] + [(3, ks) for ks in range(31, -1, -1)]
        a.i('v_add_u32 v%d, 65536, v%d' % (vT + 13, vTRb))
        AHEAD = NRING - 1
        self.l1only(['v_and_b32 v%d, 31, v0' % (vT + 14), 'v_lshlrev_b32 v%d, 3, v%d' % (vT + 14, vT + 14),
                     'v_lshrrev_b32 v%d, 5, v0' % (vT + 12), 'v_lshl_add_u32 v%d, v%d, 11, v%d' % (vT + 14, vT + 12, vT + 14),
                     'v_add_u32 v%d, %d, v%d' % (vT + 14, L_RS, vT + 14)] +
                    ['ds_read_b64 %s, v%d offset:%d' % (v2(aCS + 2 * j, 'a'), vT + 14, 24576 + 4096 * (j >> 1) + 256 * (j & 1))
                     for j in range(4)])
        for n in range(AHEAD):
            a.i(rd(n))
        sv = list(a.lg)
        self.poll(vP3)
        a.lg = sv
        G = vACC + 48
        self.emit(self.stat_loads(G, sST3))
        LA = self.frag_loads(lambda j: vB + 4 * j, 'v', sA3, 32, t3)
        for _ in range(OPT['ah3']):
            self.emit(LA.pop(0))
        stat = self.stats_fin(G, pk=False) + self.mu_frag(G) + [
            'v_add_f32 v%d, %s, v%d' % (G + 4, f32(EPS), G + 1)] + self.gelu_consts(G + 4)
        PK3 = vT + 4

        def h2store(ft):
            so, off = [(sH2o, 0), (sH2o, 2048), (sH2o3, 0), (sH2o3, 2048)][ft]
            return ('ST', ['buffer_store_dwordx4 %s, v%d, %s, s%d offen offset:%d' % (v4(PK3 + 4 * q), vL16, WS, so, off + 1024 * q)
                           for q in range(2)])

        def epi(ft, pk):
            acc = vACC + 16 * ft
            L = self.gelu_pk(acc, 16, vB) if pk else self.gelu_plain(acc, 16, vT)
            for p in range(8):
                L.append('v_cvt_pk_bf16_f32 v%d, v%d, v%d' % (PK3 + p, acc + 2 * p, acc + 2 * p + 1))
            L.append(h2store(ft))
            return L

        put = self.put

        def csm(ft):
            acc = vACC + 16 * ft
            a.i('v_mfma_f32_32x32x8_bf16 %s, %s, %s, %s' % (v16(acc), v2(aCS + 2 * ft, 'a'), v2(vMU), v16(acc)))

        filler = list(stat)
        w1 = self.small_w_loads(0)
        bg = [('L1', ['s_add_u32 s%d, s%d, 0x%x' % (t1, sSTld, O_SG - O_ST + 32768), 'v_lshlrev_b32 v62, 6, v0',
                      'buffer_load_dword v62, v62, %s, s%d offen sc1' % (WS, t1)])]
        bg += [('L1', w4[i] + w4[i + 1]) for i in range(0, len(w4), 2)]
        bg1 = [('L1', w1[i] + w1[i + 1]) for i in range(0, 16, 2)]
        for n, (ft, ks) in enumerate(seq):
            acc = vACC + 16 * ft
            if n + AHEAD < len(seq):
                a.i(rd(n + AHEAD))
            a.i('v_mfma_f32_32x32x16_bf16 %s, %s, %s, %s' % (
                v16(acc), v4(aRING + 4 * (n % NRING), 'a'), v4(vB + 4 * ks), v16(acc) if n not in (0, 1, 64, 96) else '0'))
            bud = 16
            if LA:
                if n % 2 == 0:
                    self.emit(LA.pop(0))
                    bud -= 8
            elif n >= 64 and n % OPT['w4st'] == 1 and bg:
                bud -= put(bg.pop(0))
            if n == 112:
                bg += bg1
            if n == 63:
                while filler:
                    put(filler.pop(0))
                csm(0)
                csm(1)
                filler = epi(0, False) + epi(1, False)
                bud = 0
            if n == 64:
                bud = 0
            if n in (95, 127):
                csm(ft)
            while filler and bud > 0:
                bud -= put(filler.pop(0))
        self.stamp('g3m')
        self.paced(filler + epi(2, True) + epi(3, True), bg, 16)
        assert not bg
        self.flag(sFB)
        self.stop(6)

        self.poll(vP4)
        WIN = 16

        def wb(ks):
            if OPT['wb'] and ks == OPT['wbks']:
                a.i('s_lshr_b32 s%d, s2, %d\ns_or_b32 s%d, s%d, s%d\ns_xor_b32 s%d, s%d, 1\ns_or_b32 s%d, s%d, s%d' % (
                    t0, 2 + OPT['wb'], t0, t0, sW, t1, sLay, t0, t0, t1))
                a.alt('s_cmp_eq_u32 s%d, 0' % t0, 's_cbranch_scc1',
                      ['buffer_load_dword v62, off, %s, s%d ; dummy' % (WS, sFA)], ['buffer_wbl2 sc1'])
        b4 = lambda b, ks: vB + 4 * ((ks + 28 * (1 - b)) % WIN)
        L0 = self.frag_loads(lambda j: b4(0, j), 'v', sH2x0, 28, t3)
        L1 = self.frag_loads(lambda j: b4(1, j), 'v', sH2x1, 28, t4)
        self.ksplit(28, lambda ks, w: v4(8 * ks + 4 * w, 'a'), vX, L1, L0, b4, ahead=OPT['ah4'], hook=wb)
        a.i('s_cmp_lg_u32 s%d, 0' % sLay)
        a.i('s_cbranch_scc1 L_final')
        if STAMP:
            a.i('v_mov_b32 v63, v31\nv_mov_b32 v31, 0\ns_mov_b32 s98, 0')
        self.spub(1)
        a.i('s_mov_b32 s%d, 1\ns_mov_b32 s%d, s%d\ns_add_u32 s%d, s%d, 128' % (sLay, sMH, sMH if OPT['h2sc'] else sMode, sHBo, sHBo))
        a.i('v_add_u32 v%d, v%d, v%d' % (vHL, vHL, vHLd))
        a.i('s_branch L_loop')
        a.label('L_final')
        self.pack(PK, vX, 8)
        self.emit(self.out_addr(vT, vT + 1, t0, t1))
        for t2 in range(2):
            b = PK + 4 * t2
            a.i('v_permlane32_swap_b32 v%d, v%d' % (b, b + 2))
            a.i('v_permlane32_swap_b32 v%d, v%d' % (b + 1, b + 3))
            a.i('buffer_store_dwordx4 %s, v%d, s[%d:%d], s%d offen offset:%d%s' % (v4(b), vT, rOUT, rOUT + 3, t0, 32 * t2, ['', ' sc1', ' nt'][OPT['osc']]))
        a.i('s_or_b32 s%d, s2, s%d\ns_mov_b32 s%d, 0x%x\nv_mov_b32 v%d, s%d' % (t0, sW, t1, EPO, vT + 2, sTag))
        a.alt('s_cmp_eq_u32 s%d, 0' % t0, 's_cbranch_scc1', [], [
            's_mov_b64 exec, 1', 'buffer_store_dword v%d, off, %s, s%d sc1' % (vT + 2, WS, t1), 's_mov_b64 exec, -1'])
        self.dump()
        a.label('L_end')
        a.i('s_endpgm')
        a.emit_ool()
        a.raw('L_codeend:')

    def gen(self):
        a = self.a
        name = KN + '_kernel'
        hdr = [l for l in open('ref_hdr.txt').read().split('\n')
               if l.startswith(';') and '@launch' not in l and 'Override' not in l and 'grid=ceil' not in l]
        for l in hdr:
            a.raw(l)
        a.raw('; @launch grid=(256,1,1) block=(256,1,1) lds=%d' % LDS_BYTES)
        a.raw('.amdgcn_target "amdgcn-amd-amdhsa--gfx950"\n.text')
        a.raw(kernel_header(name))
        self.prologue()
        self.nprol = len(self.names)
        self.mainloop()
        a.raw('.section .rodata,"a"')
        a.raw(kernel_desc(name, 256, 256))
        return a.text()


if __name__ == '__main__':
    path = sys.argv[1] if len(sys.argv) > 1 else 'cdna_kernels/%s.s' % KN
    for o in sys.argv[2:]:
        if o == 'stamp':
            STAMP = True
        elif o == 'slow':
            FORCE_SLOW = True
        elif o.startswith('stop='):
            STOP = int(o[5:])
        elif '=' in o:
            k, v = o.split('=')
            assert k in OPT, k
            OPT[k] = int(v)
    g = Gen()
    open(path, 'w').write(g.gen())
    if STAMP:
        n = g.names
        loop = n[g.nprol:-4]
        open(path + '.names', 'w').write(' '.join(n[:g.nprol] + loop + [n[-4]] + loop + n[-3:]))
```
